```python
import torch

def _softmax(x, axis=-1):
    return torch.softmax(x, dim=axis)

def _gelu(x):
    return torch.nn.functional.gelu(x, approximate='tanh')

def _silu(x):
    return torch.nn.functional.silu(x)

def _sigmoid(x):
    return torch.sigmoid(x)

def _layernorm(x, axis=-1, eps=1e-05):
    m = x.mean(dim=axis, keepdim=True)
    v = x.var(dim=axis, keepdim=True, unbiased=False)
    return (x - m) / torch.sqrt(v + eps)

def _scatter_add(tgt, idx, src, axis=0):
    return tgt.clone().index_add_(axis, idx, src)

def _segment_sum(src, seg, n):
    out = torch.zeros((n,) + src.shape[1:], dtype=src.dtype)
    return out.index_add_(0, seg, src)

def _pad(x, pw):
    flat = tuple((v for pair in reversed(pw) for v in pair))
    return torch.nn.functional.pad(x, flat)
kernel_name = 'recurrent_scan__sliding_local_dilated__mixer_gmlp__prompt'

def setup_inputs():

    _w = lambda a: (lambda t: t.to(torch.bfloat16) if t.is_floating_point() else t)(torch.as_tensor(a))

    def _A_setup():
        B, S, D = (1, 2048, 576)
        return {'x': _w((lambda *s: torch.randn(*s, dtype=torch.bfloat16) * 0.05)(B, S, D)), 'wqkv': _w((lambda *s: torch.randn(*s, dtype=torch.bfloat16) * 0.05)(D, 3 * D)), 'wo': _w((lambda *s: torch.randn(*s, dtype=torch.bfloat16) * 0.05)(D, D))}
    _A_in = _A_setup()

    def _B_setup():
        B, S, D, F = (1, 2048, 576, 4608)
        Fh = F // 2
        return {'x': _w((lambda *s: torch.randn(*s, dtype=torch.bfloat16) * 0.05)(B, S, D)), 'w_in': _w((lambda *s: torch.randn(*s, dtype=torch.bfloat16) * 0.8)(D, 2 * Fh)), 'w_sp': _w(0.01 * (lambda *s: torch.randn(*s, dtype=torch.bfloat16) * 0.8)(S, S)), 'b_sp': _w(1.0 + 0.01 * (lambda *s: torch.randn(*s, dtype=torch.bfloat16) * 0.05)(S)), 'w_out': _w((lambda *s: torch.randn(*s, dtype=torch.bfloat16) * 0.05)(Fh, D))}
    _B_in = _B_setup()
    return {'A_x': _A_in['x'], 'A_wqkv': _A_in['wqkv'], 'A_wo': _A_in['wo'], 'B_x': _B_in['x'], 'B_w_in': _B_in['w_in'], 'B_w_sp': _B_in['w_sp'], 'B_b_sp': _B_in['b_sp'], 'B_w_out': _B_in['w_out']}

def reference(A_x, A_wqkv, A_wo, B_x, B_w_in, B_w_sp, B_b_sp, B_w_out):

    def _A_ref(x, wqkv, wo):
        B, S, D = x.shape
        H = 32
        Dh = D // H
        W, dil = (8, 2)
        qkv = (lambda x, *d: x.permute(*d))((x @ wqkv).reshape(B, S, 3, H, Dh), 2, 0, 3, 1, 4)
        q, k, v = (qkv[0], qkv[1], qkv[2])
        scale = Dh ** (-0.5)
        pos = torch.arange(S)
        off = torch.arange(W) * dil
        idx = pos[:, None] - off[None, :]
        mask = idx >= 0
        idx_c = torch.where(mask, idx, 0).reshape(-1)
        kg = k[:, :, idx_c, :].reshape(B, H, S, W, Dh)
        vg = v[:, :, idx_c, :].reshape(B, H, S, W, Dh)
        logits = torch.einsum('bhsd,bhswd->bhsw', q, kg) * scale
        logits = torch.where(mask[None, None, :, :], logits, -1000000000.0)
        attn = _softmax(logits, axis=-1)
        o = torch.einsum('bhsw,bhswd->bhsd', attn, vg)
        return (lambda x, *d: x.permute(*d))(o, 0, 2, 1, 3).reshape(B, S, D) @ wo

    def _B_ref(x, w_in, w_sp, b_sp, w_out):
        B, S, D = x.shape
        F = w_in.shape[-1]
        Fh = F // 2
        z = _gelu(torch.einsum('bsd,df->bsf', x, w_in))
        z1 = z[..., :Fh].clone()
        z2 = _layernorm(z[..., Fh:], axis=-1)
        g = torch.einsum('ts,bsf->btf', w_sp, z2) + b_sp[None, :, None]
        return torch.einsum('bsf,fd->bsd', z1 * g, w_out)
    x = A_x
    xn = _layernorm(x, axis=-1)
    s = _A_ref(xn, A_wqkv, A_wo)
    g = _silu(_B_ref(xn, B_w_in, B_w_sp, B_b_sp, B_w_out))
    return x + s * g
```

```python
class Asm:
    def __init__(self):
        self.lines = []
        self._lab = 0
    def __call__(self, s):
        for l in s.strip("\n").split("\n"):
            self.lines.append("    " + l.strip())
    def label(self, name):
        self.lines.append(name + ":")
    def newlabel(self, base="L"):
        self._lab += 1
        return f"{base}_{self._lab}"
    def comment(self, s):
        self.lines.append("    ; " + s)
    def raw(self, s):
        self.lines.append(s)
    def text(self):
        return "\n".join(self.lines) + "\n"

def v(i, n=1):
    return f"v{i}" if n == 1 else f"v[{i}:{i+n-1}]"
def s(i, n=1):
    return f"s{i}" if n == 1 else f"s[{i}:{i+n-1}]"
def a(i, n=1):
    return f"a{i}" if n == 1 else f"a[{i}:{i+n-1}]"

def kernel_header(A, name):
    A.raw(".text")
    A.raw(f".globl {name}")
    A.raw(".p2align 8")
    A.raw(f".type {name},@function")
    A.label(name)

def kernel_desc(name, vgpr, sgpr=102, accum=None):
    if accum is None:
        accum = (vgpr + 3) // 4 * 4
    return f""".section .rodata,"a"
.p2align 6
.amdhsa_kernel {name}
  .amdhsa_next_free_vgpr {vgpr}
  .amdhsa_next_free_sgpr {sgpr}
  .amdhsa_accum_offset {accum}
  .amdhsa_group_segment_fixed_size 0
  .amdhsa_kernarg_size 88
  .amdhsa_user_sgpr_count 2
  .amdhsa_user_sgpr_kernarg_segment_ptr 1
  .amdhsa_system_sgpr_workgroup_id_x 1
.end_amdhsa_kernel
"""

def srd(A, d, base, nbytes, off=0):
    if off == 0:
        A(f"s_mov_b32 s{d}, s{base}")
        A(f"s_mov_b32 s{d+1}, s{base+1}")
    else:
        A(f"s_add_u32 s{d}, s{base}, {off}")
        A(f"s_addc_u32 s{d+1}, s{base+1}, 0")
    A(f"s_mov_b32 s{d+2}, {nbytes}")
    A(f"s_mov_b32 s{d+3}, 0x00020000")

def stamp(A, sreg):
    A(f"s_memrealtime s[{sreg}:{sreg+1}]")

def stamp_store(A, wsreg, kidx, sregs, tmp_s, vtmp=1):
    from layout import WS_DIAG
    A("s_waitcnt vmcnt(0) lgkmcnt(0)")
    A(f"s_memrealtime s[{sregs[-1]}:{sregs[-1]+1}]")
    srd(A, tmp_s, wsreg, 1 << 20, WS_DIAG + kidx * 512 * 32)
    A("s_waitcnt lgkmcnt(0)")
    A(f"s_lshl_b32 s{sregs[-1]+1}, s2, 5")
    A(f"v_mov_b32 v{vtmp}, s{sregs[-1]+1}")
    for i, r in enumerate(sregs):
        A(f"v_mov_b32 v{vtmp+1}, s{r}")
        A(f"buffer_store_dword v{vtmp+1}, v{vtmp}, s[{tmp_s}:{tmp_s+3}], 0 offen offset:{i*4}")
    A("s_waitcnt vmcnt(0)")

class Stream(Asm):
    def __init__(self):
        super().__init__()
        self.nvm = 0; self.vm_done = -1
        self.nlg = 0; self.lg_done = -1
    def vm(self, t):
        self(t); self.nvm += 1; return self.nvm - 1
    def lg(self, t):
        self(t); self.nlg += 1; return self.nlg - 1
    def wait_vm(self, tok):
        if tok is None or tok <= self.vm_done: return
        n = self.nvm - tok - 1
        if n > 63: n = 63
        self(f"s_waitcnt vmcnt({n})"); self.vm_done = self.nvm - n - 1
    def wait_lg(self, tok):
        if tok is None or tok <= self.lg_done: return
        n = self.nlg - tok - 1
        if n > 15: n = 15
        self(f"s_waitcnt lgkmcnt({n})"); self.lg_done = self.nlg - n - 1
    def drain_lg(self): self.wait_lg(self.nlg - 1)
    def drain_vm(self): self.wait_vm(self.nvm - 1)
```

```python
import sys
from k3 import gen_k3
HEAD = open("recurrent_scan__sliding_local_dilated__mixer_gmlp__prompt.s.ref").read().split("\n")
HEAD = [l for l in HEAD[:13] if l.startswith(";") and "@launch" not in l]

def build(kernels, path):
    from hazard import fix
    kernels = [(fix(k[0])[0], k[1], k[2]) for k in kernels]
    out = HEAD + [k[2] for k in kernels]
    out.append('.amdgcn_target "amdgcn-amd-amdhsa--gfx950"')
    seen = set()
    txt = "\n".join(out) + "\n"
    for k in kernels:
        if k[2] in seen: continue
        seen.add(k[2])
        txt += k[0]
    seen = set()
    for k in kernels:
        if k[2] in seen: continue
        seen.add(k[2])
        txt += k[1]
    open(path, "w").write(txt)

def gen_empty(name="empty_kernel", grid=256, block=512, lds=163840):
    from asmlib import Asm, kernel_header, kernel_desc
    A = Asm(); kernel_header(A, name); A("s_endpgm")
    return A.text(), kernel_desc(name, 256, 64), f"; @launch kernel={name} grid=({grid},1,1) block=({block},1,1) lds={lds}"

if __name__ == "__main__":
    build([gen_empty()], "empty.s")
    build([gen_empty()]*4, "empty4.s")
    st=dict(stamp=0)
    build([gen_k3(opt=st)], "k3.s")
    build([gen_k3(opt=dict(no_mfma=True, no_read=True, **st))], "k3_loadonly.s")
    build([gen_k3(opt=dict(no_mfma=True, no_read=True, no_a=True, **st))], "k3_loadB.s")
    build([gen_k3(opt=dict(no_mfma=True, no_read=True, no_b=True, **st))], "k3_loadA.s")
    build([gen_k3(opt=dict(no_load=True, **st))], "k3_noload.s")
    build([gen_k3(opt=dict(no_mfma=True, no_read=True, same=True, **st))], "k3_same.s")
    build([gen_k3(opt=dict(same=True, **st))], "k3_samefull.s")
    build([gen_k3(opt=dict(no_mfma=True, no_read=True, tovgpr=True, **st))], "k3_tovgpr.s")
    build([gen_k3(opt=dict(no_mfma=True, no_read=True, tovgpr=True, same=True, **st))], "k3_tovgpr_same.s")
    build([gen_k3(opt=dict(no_mfma=True, no_read=True, map="4x8", **st))], "k3_4x8.s")
    build([gen_k3(opt=dict(trace=True, **st))], "k3_trace.s")
    build([gen_k3(opt=dict(trace=True, same=True, **st))], "k3_trace_same.s")
    build([gen_k3(opt=dict(trace=True, no_load=True, **st))], "k3_trace_noload.s")
    build([gen_k3(opt=dict(trace=True, same=True, dblread=True, **st))], "k3_trace_dbl.s")
    build([gen_k3(opt=dict(trace=True, same=True, no_read=True, **st))], "k3_trace_noread.s")
    build([gen_k3(opt=dict(trace=True, same=True, no_read=True, no_load=True, **st))], "k3_trace_mfmaonly.s")
    build([gen_k3(opt=dict(trace=True, same=True, no_a=True, **st))], "k3_trace_noa.s")
```

```python
import re

REG = re.compile(r"\b([vsa])(\d+)\b|\b([vsa])\[(\d+):(\d+)\]")
TRANS = ("v_exp_f32", "v_log_f32", "v_rcp_f32", "v_rsq_f32", "v_sqrt_f32", "v_sin_f32", "v_cos_f32", "v_rcp_iflag_f32")

def regs_of(tok):
    out = set()
    for m in REG.finditer(tok):
        if m.group(1):
            out.add((m.group(1), int(m.group(2))))
        else:
            for i in range(int(m.group(4)), int(m.group(5)) + 1):
                out.add((m.group(3), i))
    for nm in ("vcc", "exec", "m0"):
        if re.search(rf"\b{nm}(_lo|_hi)?\b", tok):
            out.add((nm, 0))
    return out

class I:
    __slots__ = ("text", "op", "kind", "w", "r", "passes", "srcc", "ws", "wide", "dpp", "lds")

def parse(line):
    t = line.split(";")[0].strip()
    if not t or t.endswith(":") or t.startswith("."):
        return None
    x = I(); x.text = t
    parts = t.split(None, 1)
    op = parts[0]; x.op = op
    ops = [o.strip() for o in parts[1].split(",")] if len(parts) > 1 else []
    x.w = set(); x.r = set(); x.passes = 0; x.srcc = set(); x.ws = 1; x.wide = False; x.dpp = False; x.lds = False
    if op == "s_nop":
        x.kind = "nop"; x.ws = int(ops[0], 0) + 1; return x
    if op.startswith("v_mfma"):
        x.kind = "mfma"; x.passes = 8 if "32x32" in op else 4
        x.w = regs_of(ops[0]); x.r = regs_of(ops[1]) | regs_of(ops[2]); x.srcc = regs_of(ops[3]); return x
    if op.startswith("v_"):
        x.kind = "valu"
        x.dpp = "dpp" in op or "quad_perm" in t or "row_" in t
        if op.startswith("v_cmp"):
            x.w = regs_of(ops[0]); x.r = set().union(*[regs_of(o) for o in ops[1:]])
            if op.startswith("v_cmpx"): x.w |= {("exec", 0)}
        elif op.startswith("v_permlane") and "swap" in op:
            x.w = regs_of(ops[0]) | regs_of(ops[1]); x.r = set(x.w)
        elif op in ("v_add_co_u32", "v_sub_co_u32", "v_addc_co_u32", "v_subb_co_u32"):
            x.w = regs_of(ops[0]) | regs_of(ops[1]); x.r = set().union(*[regs_of(o) for o in ops[2:]])
        else:
            x.w = regs_of(ops[0]); x.r = set().union(*[regs_of(o) for o in ops[1:]]) if len(ops) > 1 else set()
            if op.startswith(("v_fmac", "v_dot2c", "v_pk_fmac")) or x.dpp: x.r |= x.w
        return x
    if op.startswith("buffer_") or op.startswith("global_"):
        x.kind = "vmem"
        x.lds = t.endswith(" lds") or " lds " in t
        allr = set().union(*[regs_of(o) for o in ops]) if ops else set()
        if "load" in op and not x.lds:
            x.w = regs_of(ops[0]); x.r = set().union(*[regs_of(o) for o in ops[1:]])
        else:
            x.r = allr
            if x.lds: x.r |= {("m0", 0)}
            if "atomic" in op and " sc0" in t: x.w = regs_of(ops[0])
        x.wide = ("store" in op) and ("x4" in op or "x3" in op)
        if x.wide:
            x.srcc = regs_of(ops[0]) if op.startswith("buffer_") else regs_of(ops[1])
        return x
    if op.startswith("ds_"):
        x.kind = "ds"
        if "read" in op or "permute" in op or "swizzle" in op:
            x.w = regs_of(ops[0]); x.r = set().union(*[regs_of(o) for o in ops[1:]])
        else:
            x.r = set().union(*[regs_of(o) for o in ops])
        return x
    x.kind = "salu"
    if op.startswith(("s_cmp", "s_cbranch", "s_branch", "s_waitcnt", "s_barrier", "s_endpgm", "s_setprio", "s_sleep")):
        x.r = set().union(*[regs_of(o) for o in ops]) if ops else set()
    else:
        x.w = regs_of(ops[0]) if ops else set(); x.r = set().union(*[regs_of(o) for o in ops[1:]]) if len(ops) > 1 else set()
    return x

def isv(r): return r[0] in ("v", "a")
def need(p, c):
    n = 0
    vw = {r for r in p.w if isv(r)}
    if p.kind == "valu":
        if c.kind == "mfma" and vw & (c.r | c.srcc): n = max(n, 2)
        if c.kind == "valu":
            if p.op in TRANS and c.op not in TRANS and vw & c.r: n = max(n, 1)
            if p.op in TRANS and c.op in TRANS and vw & c.r: n = max(n, 1)
            if c.op.startswith("v_permlane") and vw & c.r: n = max(n, 2)
            if c.dpp and vw & c.r: n = max(n, 2)
            if c.op.startswith(("v_readlane", "v_readfirstlane")) and vw & c.r: n = max(n, 1)
            sw = {r for r in p.w if r[0] in ("s", "vcc")}
            if sw & c.r: n = max(n, 2 if not c.op.startswith(("v_readlane", "v_writelane")) else 4)
            if ("exec", 0) in p.w: n = max(n, 5 if c.dpp else 4)
        if p.op.startswith("v_dot"):
            if c.op == p.op:
                ops = [o.strip() for o in c.text.split(None, 1)[1].split(",")]
                if vw & (regs_of(ops[1]) | regs_of(ops[2])): n = max(n, 3)
            elif vw & (c.r | c.w | c.srcc): n = max(n, 3)
        if c.kind == "mfma" and ("exec", 0) in p.w: n = max(n, 4)
        if c.kind == "vmem":
            sw = {r for r in p.w if r[0] in ("s", "vcc")}
            if sw & c.r: n = max(n, 5)
        if p.op in TRANS and c.kind in ("vmem", "ds") and vw & c.r: n = max(n, 1)
    if p.kind == "mfma":
        big = 8 if p.passes == 4 else 12
        if c.kind == "mfma":
            if vw & c.r: n = max(n, big)
            if vw & c.srcc and not (vw == c.srcc and p.passes == c.passes): n = max(n, big - 2)
            if vw & c.w and not (vw == c.srcc): n = max(n, big - 2)
        elif c.kind in ("valu", "vmem", "ds"):
            if vw & (c.r | c.w): n = max(n, big)
        if c.kind == "valu" and p.srcc & c.w: n = max(n, 3 if p.passes == 4 else 7)
    if p.kind == "salu" and ("m0", 0) in p.w and c.kind == "vmem" and c.lds: n = max(n, 1)
    if p.kind == "vmem" and p.wide:
        if p.srcc & c.w: n = max(n, 2 if c.kind == "valu" else 1)
    return n

def fix(text, verbose=False):
    lines = text.split("\n")
    out = []; hist = []
    ins = 0
    for ln in lines:
        x = parse(ln)
        if x is None:
            out.append(ln); continue
        dist = 0; add = 0
        for p in reversed(hist):
            if dist >= 12: break
            nd = need(p, x)
            if nd > dist: add = max(add, nd - dist)
            dist += p.ws
        if add:
            out.append(f"    s_nop {add-1}"); ins += 1
            n = parse(f"s_nop {add-1}"); hist.append(n)
            if verbose: print("nop", add, "before", x.text)
        out.append(ln); hist.append(x)
        if x.op in ("s_endpgm", "s_branch"): hist = []
        hist = hist[-16:]
    return "\n".join(out), ins
```

```python
from asmlib import *
from layout import *
import struct

def f32(x): return "0x%08x" % struct.unpack("<I", struct.pack("<f", x))[0]

SLOT = 18432
NSL = 8
XA = 163840 - 77824
XP = 608
SA = 147456
C1 = -2.0 * 0.7978845608028654 * 1.4426950408889634
C2 = C1 * 0.044715

V_TR, V_D0, V_SE, V_SO, V_C1 = 1, 2, 5, 6, 7
V_ST = 8
T = 12
BF = [20, 24, 28, 252]
ACC = 32
PP = 72
AX = 108
XR = 32

def gen_k1(name="k1_kernel", opt=None):
    opt = opt or {}
    st_ = opt.get("stamp", None)
    rate = opt.get("rate", [0, 3, 4])
    H = Asm()
    kernel_header(H, name)
    L = lambda s_: f"{name}_{s_}"
    H("s_cmp_ge_u32 s2, 256")
    H(f"s_cbranch_scc1 {L('end')}")
    if st_ is not None: stamp(H, 80)
    H("s_load_dwordx4 s[4:7], s[0:1], 0")
    H("s_load_dwordx2 s[8:9], s[0:1], 32")
    H("s_load_dwordx4 s[44:47], s[0:1], 72")
    H("s_and_b32 s50, s2, 7")
    H("s_lshr_b32 s51, s2, 3")
    H("s_lshr_b32 s48, s50, 2")
    H("s_lshl_b32 s48, s48, 3")
    H("s_lshr_b32 s52, s51, 2")
    H("s_add_u32 s48, s48, s52")
    H("s_and_b32 s49, s50, 3")
    H("s_lshl_b32 s49, s49, 2")
    H("s_and_b32 s52, s51, 3")
    H("s_add_u32 s49, s49, s52")
    H("v_lshrrev_b32 v1, 6, v0")
    H("v_and_b32 v0, 63, v0")
    H("v_readfirstlane_b32 s50, v1")
    H("v_lshrrev_b32 v1, 2, v0")
    H("s_lshl_b32 s52, s48, 7")
    H("s_lshl_b32 s53, s50, 4")
    H("s_add_u32 s52, s52, s53")
    H("v_add_u32 v2, s52, v1")
    H("v_mul_u32_u24 v2, 1152, v2")
    H("v_and_b32 v3, 3, v0")
    H("v_lshl_add_u32 v12, v3, 4, v2")
    H("s_and_b32 s51, s50, 3")
    H("s_waitcnt lgkmcnt(0)")
    srd(H, 12, 4, S * D * 2)
    text = H.text()

    A = Stream()
    xt = [A.vm(f"buffer_load_dwordx4 {v(XR+4*n,4)}, v12, s[12:15], 0 offen offset:{n*64}") for n in range(18)]
    srd(A, 16, 8, D * F * 2)
    srd(A, 20, 6, D * 1728 * 2)
    A("s_lshl_b32 s52, s50, 3")
    A("s_mul_i32 s53, s49, 288")
    for p in range(3):
        A(f"v_add_u32 v13, {64*p}, v0")
        A("v_mul_u32_u24 v14, 3641, v13")
        A("v_lshrrev_b32 v14, 16, v14")
        A("v_mul_u32_u24 v15, 18, v14")
        A("v_sub_u32 v13, v13, v15")
        A("v_add_u32 v14, s52, v14")
        A("v_mul_u32_u24 v14, 9216, v14")
        A("v_lshlrev_b32 v13, 4, v13")
        A(f"v_add3_u32 v{V_D0+p}, v14, v13, s53")
        if p: A(f"v_subrev_u32 v{V_D0+p}, {1024*p}, v{V_D0+p}")
    A("s_mul_i32 s54, s50, 2304")
    A("s_mul_i32 s55, s50, 1792")
    A("s_mov_b32 s56, 0xffff")
    A("s_mov_b32 s57, 0")
    A("s_mov_b32 s58, -1")
    A("s_mov_b32 s59, 0xffff")

    dma_tok = {}
    def dma(A, st):
        slot = st % NSL
        if opt.get("no_dma"):
            return
        if st < 18:
            so = (4608 if st < 9 else 0) + (st % 9) * 64 * 9216
            A(f"s_add_u32 m0, s54, {slot*SLOT}")
            A(f"s_mov_b32 s60, {so}")
            A.vm(f"buffer_load_dwordx4 v{V_D0}, s[16:19], s60 offen lds")
            A.vm(f"buffer_load_dwordx4 v{V_D0+1}, s[16:19], s60 offen offset:1024 lds")
            A("s_mov_b64 exec, s[56:57]")
            t = A.vm(f"buffer_load_dwordx4 v{V_D0+2}, s[16:19], s60 offen offset:2048 lds")
            A("s_mov_b64 exec, -1")
        else:
            so = (st - 18) * 64 * 3456
            A(f"s_add_u32 m0, s55, {slot*SLOT}")
            A(f"s_mov_b32 s60, {so}")
            A.vm(f"buffer_load_dwordx4 v{V_D0}, s[20:23], s60 offen lds")
            A("s_mov_b64 exec, s[58:59]")
            t = A.vm(f"buffer_load_dwordx4 v{V_D0+1}, s[20:23], s60 offen offset:1024 lds")
            A("s_mov_b64 exec, -1")
        dma_tok[st] = t
    for st in range(4):
        dma(A, st)
    srd(A, 24, 46, SZ_Z, WS_Z2N)
    srd(A, 28, 46, SZ_Z, WS_Z1)
    srd(A, 32, 46, SZ_QKV, WS_QKV)
    srd(A, 36, 46, 16 * 16 * 128 * 8, WS_STAT)
    srd(A, 40, 44, 256)
    A("s_mov_b32 s61, 0x3f803f80")
    A("s_mov_b32 s62, 0xffff0000")
    A("s_lshl_b32 s52, s50, 4")
    A("v_add_u32 v13, s52, v1")
    A(f"v_mul_u32_u24 v13, {XP}, v13")
    A("v_and_b32 v15, 1, v0")
    A("v_lshlrev_b32 v15, 5, v15")
    A("v_and_b32 v16, 2, v0")
    A("v_lshlrev_b32 v16, 2, v16")
    A("v_add3_u32 v13, v13, v15, v16")
    A(f"v_add_u32 v13, {XA}, v13")
    A("v_and_b32 v14, 15, v0")
    A("s_lshl_b32 s52, s51, 5")
    A("v_add_u32 v14, s52, v14")
    A(f"v_mul_u32_u24 v14, {XP}, v14")
    A("v_lshrrev_b32 v15, 4, v0")
    A("v_lshl_add_u32 v14, v15, 4, v14")
    A(f"v_add_u32 v14, {XA}, v14")
    for r in range(4):
        A(f"v_mov_b32 v{V_ST+r}, 0")
    if st_ is not None:
        A.wait_vm(xt[17]); stamp(A, 76)
    for n in range(18):
        A.wait_vm(xt[n])
        for r in range(4):
            x = XR + 4 * n + r
            A(f"v_dot2_f32_bf16 v{V_ST+(r&1)*2}, v{x}, s61, v{V_ST+(r&1)*2}")
            A(f"v_dot2_f32_bf16 v{V_ST+(r&1)*2+1}, v{x}, v{x}, v{V_ST+(r&1)*2+1}")
    A(f"v_add_f32 v{V_ST}, v{V_ST}, v{V_ST+2}")
    A(f"v_add_f32 v{V_ST+1}, v{V_ST+1}, v{V_ST+3}")
    for qp in ("[1,0,3,2]", "[2,3,0,1]"):
        A(f"v_add_f32_dpp v{V_ST}, v{V_ST}, v{V_ST} quad_perm:{qp} row_mask:0xf bank_mask:0xf")
        A(f"v_add_f32_dpp v{V_ST+1}, v{V_ST+1}, v{V_ST+1} quad_perm:{qp} row_mask:0xf bank_mask:0xf")
    A(f"v_mul_f32 v{V_ST}, {f32(1.0/576)}, v{V_ST}")
    A(f"v_mul_f32 v{V_ST+1}, {f32(1.0/576)}, v{V_ST+1}")
    A(f"v_fma_f32 v{V_ST+1}, -v{V_ST}, v{V_ST}, v{V_ST+1}")
    A(f"v_max_f32 v{V_ST+1}, 0, v{V_ST+1}")
    A(f"v_add_f32 v{V_ST+1}, {f32(1e-5)}, v{V_ST+1}")
    A(f"v_rsq_f32 v{V_ST+2}, v{V_ST+1}")
    A(f"v_mul_f32 v{V_ST}, -v{V_ST}, v{V_ST+2}")
    if st_ is not None: stamp(A, 78); A("s_waitcnt lgkmcnt(0)")
    def norm(n):
        for r in range(4):
            x = XR + 4 * n + r
            t = 16 + (r & 1) * 2
            A(f"v_lshlrev_b32 v{t}, 16, v{x}")
            A(f"v_and_b32 v{t+1}, s62, v{x}")
            A(f"v_pk_fma_f32 {v(t,2)}, {v(t,2)}, {v(V_ST+2,2)}, {v(V_ST,2)} op_sel_hi:[1,0,0]")
            A(f"v_cvt_pk_bf16_f32 v{x}, v{t}, v{t+1}")
    def xwrite(n):
        x = XR + 4 * n
        o = (n % 9) * 8
        A.lg(f"ds_write2_b64 v13, {v(x,2)}, {v(x+2,2)} offset0:{o} offset1:{o+2}")
    def xread(half):
        toks = []
        for c in range(9):
            for rt in range(2):
                toks.append(A.lg(f"ds_read_b128 {v(AX+(rt*18+half*9+c)*4,4)}, v14 offset:{rt*16*XP + c*64}"))
        return toks
    for n in range(9):
        norm(n); xwrite(n)
    for n in range(9, 18):
        norm(n)
    A.drain_lg()
    A("s_barrier")
    xread(0)
    A.drain_lg()
    A("s_barrier")
    for n in range(9, 18):
        xwrite(n)
    A.wait_vm(dma_tok.get(1))
    A.drain_lg()
    A("s_barrier")
    xr2 = xread(1)
    if st_ is not None: stamp(A, 82); A.nlg += 2; A.drain_lg()
    A(f"v_mov_b32 v{V_C1}, {f32(C1)}")
    for r in range(4):
        A(f"v_mov_b32 v{V_ST+r}, 0")
    A("s_cmp_ge_u32 s50, 4")
    A(f"s_cbranch_scc1 {L('j1')}")
    text += A.text()
    base = A

    def program(j):
        A = Stream()
        A.nvm, A.vm_done, A.nlg, A.lg_done = base.nvm, base.vm_done, base.nlg, base.lg_done
        tiles = [list(range(0, 5)), list(range(0, 4)), list(range(0, 4))] if j == 0 else [list(range(5, 9)), list(range(4, 9)), list(range(4, 7))]
        PA = PP
        PB = PP + 4 * len(tiles[0])
        pend = [PA, PB]
        acc = lambda a_, rt: ACC + (a_ * 2 + rt) * 4
        pitch = [288, 288, 224]
        A(f"v_lshrrev_b32 v{V_TR}, 2, v0")
        A(f"v_mul_u32_u24 v{V_TR}, 288, v{V_TR}")
        A("v_and_b32 v12, 3, v0")
        A(f"v_lshl_add_u32 v{V_TR}, v12, 3, v{V_TR}")
        FR = []
        for job in range(3):
            for s9 in range(9):
                for c in range(2):
                    for ai, t in enumerate(tiles[job]):
                        FR.append((job, job * 9 + s9, c, ai, t))
        rtok = {}
        state = dict(cur_stage=0)
        def issue_read(n):
            job, st, c, ai, t = FR[n]
            if st != state["cur_stage"]:
                if st == 18:
                    A(f"v_lshrrev_b32 v{V_TR}, 2, v0")
                    A(f"v_mul_u32_u24 v{V_TR}, 224, v{V_TR}")
                    A(f"v_and_b32 v{V_D0+2}, 3, v0")
                    A(f"v_lshl_add_u32 v{V_TR}, v{V_D0+2}, 3, v{V_TR}")
                    A(f"v_add_u32 v{V_TR}, {(st % NSL)*SLOT}, v{V_TR}")
                elif st % NSL == 0:
                    A(f"v_subrev_u32 v{V_TR}, {(NSL-1)*SLOT}, v{V_TR}")
                else:
                    A(f"v_add_u32 v{V_TR}, {SLOT}, v{V_TR}")
                state["cur_stage"] = st
            b = BF[n % 4]
            p = pitch[job]
            A.lg(f"ds_read_b64_tr_b16 {v(b,2)}, v{V_TR} offset:{c*32*p + t*32}")
            rtok[n] = A.lg(f"ds_read_b64_tr_b16 {v(b+2,2)}, v{V_TR} offset:{(c*32+16)*p + t*32}")

        fillers = []
        def F(s_):
            if opt.get("no_valu"): return
            fillers.append(lambda: A(s_))
        def run_fillers(k):
            for _ in range(k):
                if fillers: fillers.pop(0)()

        def gelu_group(P, kind, a_, rt, t):
            X = [T + r for r in range(4)]; U = [T + 4 + r for r in range(4)]
            F(f"v_lshlrev_b32 v{X[0]}, 16, v{P}")
            F(f"v_and_b32 v{X[1]}, s62, v{P}")
            F(f"v_lshlrev_b32 v{X[2]}, 16, v{P+1}")
            F(f"v_and_b32 v{X[3]}, s62, v{P+1}")
            for r in range(4): F(f"v_mul_f32 v{U[r]}, v{X[r]}, v{X[r]}")
            for r in range(4): F(f"v_fmamk_f32 v{U[r]}, v{U[r]}, {f32(C2)}, v{V_C1}")
            for r in range(4): F(f"v_mul_f32 v{U[r]}, v{U[r]}, v{X[r]}")
            for r in range(4): F(f"v_exp_f32 v{U[r]}, v{U[r]}")
            for r in range(4): F(f"v_add_f32 v{U[r]}, 1.0, v{U[r]}")
            for r in range(4): F(f"v_rcp_f32 v{U[r]}, v{U[r]}")
            for r in range(4): F(f"v_mul_f32 v{X[r]}, v{X[r]}, v{U[r]}")
            F(f"v_cvt_pk_bf16_f32 v{P}, v{X[0]}, v{X[1]}")
            F(f"v_cvt_pk_bf16_f32 v{P+1}, v{X[2]}, v{X[3]}")
            if kind == "z2":
                for q in range(2):
                    F(f"v_dot2_f32_bf16 v{V_ST+2*rt}, v{P+q}, s61, v{V_ST+2*rt}")
                    F(f"v_dot2_f32_bf16 v{V_ST+2*rt+1}, v{P+q}, v{P+q}, v{V_ST+2*rt+1}")
            else:
                def st():
                    A(f"s_mov_b32 s63, {rt*72*1024 + (t//2)*1024}")
                    A.vm(f"buffer_store_dwordx2 {v(P,2)}, v{V_SE if t % 2 == 0 else V_SO}, s[28:31], s63 offen")
                fillers.append(st)

        ev = {}
        def stats_to_lds():
            A(f"v_and_b32 v{T}, 15, v0")
            A("s_lshl_b32 s63, s51, 5")
            A(f"v_add_u32 v{T}, s63, v{T}")
            A(f"v_lshlrev_b32 v{T}, 6, v{T}")
            A(f"v_lshrrev_b32 v{T+1}, 4, v0")
            A(f"v_lshl_add_u32 v{T}, v{T+1}, 3, v{T}")
            A.lg(f"ds_write_b64 v{T}, {v(V_ST,2)} offset:{SA + j*32}" if SA + 1024 + 32 < 65536 else f"ds_write_b64 v{T}, {v(V_ST,2)}")
        def stats_to_lds():
            A(f"v_and_b32 v{T}, 15, v0")
            A("s_lshl_b32 s63, s51, 5")
            A(f"v_add_u32 v{T}, s63, v{T}")
            A(f"v_lshlrev_b32 v{T}, 6, v{T}")
            A(f"v_lshrrev_b32 v{T+1}, 4, v0")
            A(f"v_lshl_add_u32 v{T}, v{T+1}, 3, v{T}")
            A(f"v_add_u32 v{T}, {SA + j*32}, v{T}")
            A.lg(f"ds_write_b64 v{T}, {v(V_ST,2)}")
            ev["stl"] = A.lg(f"ds_write_b64 v{T}, {v(V_ST+2,2)} offset:1024")
            ev["stl_stage"] = state["mstage"]
        def stats_publish():
            A(f"v_and_b32 v{V_ST+2}, 31, v0")
            A("s_lshl_b32 s63, s51, 5")
            A(f"v_add_u32 v{V_ST+2}, s63, v{V_ST+2}")
            A(f"v_lshlrev_b32 v{V_ST+3}, 6, v{V_ST+2}")
            A(f"v_add_u32 v{V_ST+3}, {SA}, v{V_ST+3}")
            for hh in range(2):
                A.lg(f"ds_read_b128 {v(T,4)}, v{V_ST+3} offset:{hh*32}")
                tk = A.lg(f"ds_read_b128 {v(T+4,4)}, v{V_ST+3} offset:{hh*32+16}")
                A.wait_lg(tk)
                if hh == 0:
                    A(f"v_add_f32 v{V_ST}, v{T}, v{T+2}")
                    A(f"v_add_f32 v{V_ST+1}, v{T+1}, v{T+3}")
                else:
                    for e in range(2):
                        A(f"v_add_f32 v{V_ST}, v{V_ST}, v{T+2*e}")
                        A(f"v_add_f32 v{V_ST+1}, v{V_ST+1}, v{T+2*e+1}")
                for e in range(2, 4):
                    A(f"v_add_f32 v{V_ST}, v{V_ST}, v{T+2*e}")
                    A(f"v_add_f32 v{V_ST+1}, v{V_ST+1}, v{T+2*e+1}")
            A(f"v_lshlrev_b32 v{V_ST+2}, 3, v{V_ST+2}")
            A("s_lshl_b32 s63, s48, 4")
            A("s_add_u32 s63, s63, s49")
            A("s_lshl_b32 s63, s63, 10")
            ev["pub"] = A.vm(f"buffer_store_dwordx2 {v(V_ST,2)}, v{V_ST+2}, s[36:39], s63 offen sc1")
        def signal():
            A(f"v_mov_b32 v{V_ST+3}, 4")
            A("s_lshl_b32 s63, s48, 2")
            A("s_cmp_eq_u32 s50, 0")
            A("s_cselect_b32 s63, s63, 0x1000")
            A("s_mov_b64 exec, 1")
            A.vm(f"buffer_atomic_add v{V_ST+3}, off, s[40:43], s63 sc1")
            A("s_mov_b64 exec, -1")
        def poll_issue():
            A("s_lshl_b32 s64, s48, 2")
            ev["poll"] = A.vm(f"buffer_load_dword v{V_ST+2}, off, s[40:43], s64 sc1")
        if j == 0:
            PR = [ACC + 32 + 2 * k for k in range(4)] + [PB + 2 * k for k in range(4)]
        else:
            PR = [ACC + 24 + 2 * k for k in range(8)]
        def poll_check_and_load():
            A.wait_vm(ev["poll"])
            A(f"v_readfirstlane_b32 s65, v{V_ST+2}")
            A("s_nop 3")
            A("s_cmp_ge_u32 s65, 64")
            A(f"s_cbranch_scc1 {L(f'pok{j}')}")
            A.label(L(f"pspin{j}"))
            A("s_sleep 4")
            A(f"buffer_load_dword v{V_ST+2}, off, s[40:43], s64 sc1")
            A("s_waitcnt vmcnt(0)")
            A(f"v_readfirstlane_b32 s65, v{V_ST+2}")
            A("s_nop 3")
            A("s_cmp_ge_u32 s65, 64")
            A(f"s_cbranch_scc0 {L(f'pspin{j}')}")
            A.label(L(f"pok{j}"))
            A(f"v_lshrrev_b32 v{V_ST+2}, 4, v0")
            A(f"v_lshlrev_b32 v{V_ST+2}, 12, v{V_ST+2}")
            A(f"v_and_b32 v{V_ST+3}, 15, v0")
            A(f"v_lshl_add_u32 v{V_ST+2}, v{V_ST+3}, 3, v{V_ST+2}")
            A("s_lshl_b32 s63, s48, 14")
            A("s_lshl_b32 s65, s51, 8")
            A("s_add_u32 s63, s63, s65")
            for rt in range(2):
                for e in range(4):
                    ev["part"] = A.vm(f"buffer_load_dwordx2 {v(PR[rt*4+e],2)}, v{V_ST+2}, s[36:39], s63 offen offset:{e*1024 + rt*128} sc1")
        def stats_final():
            A.wait_vm(ev["part"])
            for rt in range(2):
                for c_ in range(2):
                    d = V_ST + 2 * rt + c_
                    A(f"v_add_f32 v{d}, v{PR[rt*4]+c_}, v{PR[rt*4+1]+c_}")
                    A(f"v_add_f32 v{T}, v{PR[rt*4+2]+c_}, v{PR[rt*4+3]+c_}")
                    A(f"v_add_f32 v{d}, v{d}, v{T}")
            for sw in ("v_permlane32_swap_b32", "v_permlane16_swap_b32"):
                for r in range(4):
                    A(f"v_mov_b32 v{T+r}, v{V_ST+r}")
                for r in range(4):
                    A(f"{sw} v{V_ST+r}, v{T+r}")
                for r in range(4):
                    A(f"v_add_f32 v{V_ST+r}, v{V_ST+r}, v{T+r}")
            for rt in range(2):
                m, q = V_ST + 2 * rt, V_ST + 2 * rt + 1
                A(f"v_mul_f32 v{m}, {f32(1.0/FH)}, v{m}")
                A(f"v_mul_f32 v{q}, {f32(1.0/FH)}, v{q}")
                A(f"v_fma_f32 v{q}, -v{m}, v{m}, v{q}")
                A(f"v_max_f32 v{q}, 0, v{q}")
                A(f"v_add_f32 v{q}, {f32(1e-5)}, v{q}")
                A(f"v_rsq_f32 v{q}, v{q}")
                A(f"v_mul_f32 v{m}, -v{m}, v{q}")
            A(f"v_bfe_u32 v{T}, v0, 2, 1")
            A(f"v_lshlrev_b32 v{V_D0}, 9, v{T}")
            A(f"v_bfe_u32 v{T}, v0, 3, 1")
            A(f"v_lshl_add_u32 v{V_D0}, v{T}, 7, v{V_D0}")
            A(f"v_and_b32 v{T}, 3, v0")
            A(f"v_lshl_add_u32 v{V_D0}, v{T}, 5, v{V_D0}")
            A(f"v_lshrrev_b32 v{T}, 4, v0")
            A(f"v_lshl_add_u32 v{V_D0}, v{T}, 3, v{V_D0}")
            A("s_lshl_b32 s66, s49, 6")
            A("s_lshl_b32 s65, s48, 2")
            A("s_add_u32 s66, s66, s65")
            A("s_add_u32 s66, s66, s51")
            A("s_mul_i32 s66, s66, 9216")
        def norm_group(P, rt, t):
            m, q = V_ST + 2 * rt, V_ST + 2 * rt + 1
            X = [T + (0 if rt == 0 else 4) + r for r in range(4)]
            F(f"v_lshlrev_b32 v{X[0]}, 16, v{P}")
            F(f"v_and_b32 v{X[1]}, s62, v{P}")
            F(f"v_lshlrev_b32 v{X[2]}, 16, v{P+1}")
            F(f"v_and_b32 v{X[3]}, s62, v{P+1}")
            for r in range(4): F(f"v_fma_f32 v{X[r]}, v{X[r]}, v{q}, v{m}")
            F(f"v_cvt_pk_bf16_f32 v{P}, v{X[0]}, v{X[1]}")
            F(f"v_cvt_pk_bf16_f32 v{P+1}, v{X[2]}, v{X[3]}")
            def st():
                A(f"s_add_u32 s63, s66, {t*1024}")
                A.vm(f"buffer_store_dwordx2 {v(P,2)}, v{V_D0}, s[24:27], s63 offen offset:{rt*256}")
            fillers.append(st)
        def z1_addr():
            A("s_and_b32 s63, s49, 1")
            A("s_lshl_b32 s65, s48, 3")
            A("s_lshl_b32 s66, s51, 1")
            A("s_add_u32 s65, s65, s66")
            A("s_mul_i32 s65, s65, 72")
            A("s_mul_i32 s66, s49, 9")
            A("s_lshr_b32 s66, s66, 1")
            A("s_add_u32 s65, s65, s66")
            A("s_lshl_b32 s65, s65, 10")
            A("s_cmp_eq_u32 s63, 0")
            A("s_cselect_b32 s66, 8, 1024")
            A("s_add_u32 s66, s66, s65")
            A("s_lshl_b32 s63, s63, 3")
            A("s_add_u32 s65, s65, s63")
            A(f"v_lshlrev_b32 v{V_SE}, 4, v0")
            A(f"v_add_u32 v{V_SO}, s66, v{V_SE}")
            A(f"v_add_u32 v{V_SE}, s65, v{V_SE}")
        def qkv_dma_addr():
            A("s_mul_i32 s67, s49, 27")
            A("s_lshr_b32 s67, s67, 2")
            A("s_lshl_b32 s67, s67, 5")
            A("s_lshl_b32 s63, s50, 3")
            for p in range(2):
                A(f"v_add_u32 v{V_SE}, {64*p}, v0")
                A(f"v_mul_u32_u24 v{V_SO}, 4682, v{V_SE}")
                A(f"v_lshrrev_b32 v{V_SO}, 16, v{V_SO}")
                A(f"v_mul_u32_u24 v{V_D0+p}, 14, v{V_SO}")
                A(f"v_sub_u32 v{V_SE}, v{V_SE}, v{V_D0+p}")
                A(f"v_add_u32 v{V_SO}, s63, v{V_SO}")
                A(f"v_mul_u32_u24 v{V_SO}, 3456, v{V_SO}")
                A(f"v_lshlrev_b32 v{V_SE}, 4, v{V_SE}")
                A(f"v_add3_u32 v{V_D0+p}, v{V_SO}, v{V_SE}, s67")
                if p: A(f"v_subrev_u32 v{V_D0+p}, 1024, v{V_D0+p}")

        cvt_pending = {}
        def cvt_slot(job, a_):
            out = []
            for rt in range(2):
                P = pend[job] + (a_ * 2 + rt) * 2
                c = acc(a_, rt)
                out.append(f"v_cvt_pk_bf16_f32 v{P}, v{c}, v{c+1}")
                out.append(f"v_cvt_pk_bf16_f32 v{P+1}, v{c+2}, v{c+3}")
            return out

        DIST = 3
        for n in range(DIST):
            issue_read(n)
        state["mstage"] = 0
        pub_state = 0
        for n, (job, st, c, ai, t) in enumerate(FR):
            k = (st % 9) * 2 + c
            if st != state["mstage"]:
                if st == 1:
                    A.wait_lg(xr2[-1])
                if st + 1 in dma_tok: A.wait_vm(dma_tok[st + 1])
                if "stl" in ev: A.wait_lg(ev["stl"])
                if pub_state == 2 and st == PUB_STAGE + 2: A.wait_vm(ev["pub"])
                A("s_barrier")
                state["mstage"] = st
                if st_ is not None and st in (9, 18):
                    stamp(A, 70 + (st // 9) * 2); A.nlg += 2; A.drain_lg()
                if st == 1:
                    for s2 in range(4, 9): dma(A, s2)
                elif st + 7 < 27:
                    if st + 7 == 18: qkv_dma_addr()
                    dma(A, st + 7)
                if st == PUB_STAGE:
                    assert ev["stl_stage"] < st, ("stats not finished early enough", ev.get("stl_stage"))
                    if j == 0: stats_publish(); pub_state = 2
                elif st == PUB_STAGE + 2 and j == 0:
                    signal(); pub_state = 3
                if st == 12: z1_addr()
                if st == POLL_STAGE: poll_issue()
                if st == POLL_STAGE + 1:
                    assert ev.get("z1_done", 0) >= 4 or j == 1, ev.get("z1_done")
                    poll_check_and_load()
                if st % 9 == 0:
                    pj = job - 1
                    for a_ in range(len(tiles[pj])):
                        cvt_pending[a_] = cvt_slot(pj, a_)
                    extra = [a_ for a_ in cvt_pending if a_ >= len(tiles[job])]
                    for a_ in extra:
                        for s_ in cvt_pending.pop(a_): F(s_)
                    state["queue_gelu"] = pj
            if n + DIST < len(FR):
                issue_read(n + DIST)
            if ai in cvt_pending:
                for s_ in cvt_pending.pop(ai): A(s_)
            A.wait_lg(rtok[n])
            if k >= 9 and st < 9: A.wait_lg(xr2[-1])
            b = BF[n % 4]
            for rt in range(2):
                cc = "0" if k == 0 else v(acc(ai, rt), 4)
                if not opt.get("no_mfma"):
                    A(f"v_mfma_f32_16x16x32_bf16 {v(acc(ai,rt),4)}, {v(b,4)}, {v(AX+(rt*18+k)*4,4)}, {cc}")
                run_fillers(rate[job] if rt == 0 else rate[job])
            if state.get("queue_gelu") is not None and not cvt_pending:
                pj = state.pop("queue_gelu")
                for a_, tt in enumerate(tiles[pj]):
                    for rt in range(2):
                        gelu_group(pend[pj] + (a_ * 2 + rt) * 2, "z2" if pj == 0 else "z1", a_, rt, tt)
                        if pj == 1:
                            def inc(): ev["z1_done"] = ev.get("z1_done", 0) + 1
                            fillers.append(inc)
                if pj == 0:
                    fillers.append(stats_to_lds)
                else:
                    def late():
                        assert "part" in ev, "z1 gelu finished before partial loads were issued"
                        stats_final()
                    state["late"] = late
            if state.get("late") is not None and not fillers and "part" in ev and st >= POLL_STAGE + 3:
                state.pop("late")()
                for a_, tt in enumerate(tiles[0]):
                    for rt in range(2):
                        norm_group(PA + (a_ * 2 + rt) * 2, rt, tt)
        if st_ is not None: stamp(A, 84); A.nlg += 2
        run_fillers(10 ** 6)
        if state.get("late") is not None:
            state.pop("late")()
            for a_, tt in enumerate(tiles[0]):
                for rt in range(2):
                    norm_group(PA + (a_ * 2 + rt) * 2, rt, tt)
        A(f"v_and_b32 v{V_SE}, 15, v0")
        A("s_lshl_b32 s63, s48, 7")
        A("s_lshl_b32 s65, s51, 5")
        A("s_add_u32 s63, s63, s65")
        A(f"v_add_u32 v{V_SE}, s63, v{V_SE}")
        A(f"v_mul_u32_u24 v{V_SE}, 3456, v{V_SE}")
        A(f"v_lshrrev_b32 v{V_SO}, 4, v0")
        A(f"v_lshlrev_b32 v{V_SO}, 3, v{V_SO}")
        A(f"v_add3_u32 v{V_SE}, v{V_SE}, v{V_SO}, s67")
        A("s_mov_b32 s65, 55296")
        for a_, tt in enumerate(tiles[2]):
            for rt in range(2):
                c = acc(a_, rt)
                A(f"v_cvt_pk_bf16_f32 v{c}, v{c}, v{c+1}")
                A(f"v_cvt_pk_bf16_f32 v{c+1}, v{c+2}, v{c+3}")
                A.vm(f"buffer_store_dwordx2 {v(c,2)}, v{V_SE}, s[32:35], {'s65' if rt else '0'} offen offset:{tt*32}")
        run_fillers(10 ** 6)
        if st_ is not None and j == 0:
            A("s_cmp_eq_u32 s50, 0")
            A(f"s_cbranch_scc0 {L('end')}")
            stamp_store(A, 46, st_, [80, 76, 78, 82, 72, 74, 84, 86], 88, vtmp=12)
        A("s_endpgm")
        return A.text()

    PUB_STAGE = opt.get("pub", 18)
    POLL_STAGE = opt.get("poll", 22)
    saved = dict(dma_tok)
    text += program(0)
    text += L("j1") + ":\n"
    dma_tok.clear(); dma_tok.update(saved)
    text += program(1)
    text += L("end") + ":\n    s_endpgm\n"
    return text, kernel_desc(name, 256, 96), f"; @launch kernel={name} grid=(256,1,1) block=(512,1,1) lds=163840"
```

```python
from asmlib import *
from layout import *
from k1 import f32
import math

def gen_k2(name="k2_kernel", opt=None):
    A = Stream()
    kernel_header(A, name)
    L = lambda s_: f"{name}_{s_}"
    A("s_cmp_ge_u32 s2, 256")
    A(f"s_cbranch_scc1 {L('end')}")
    A("s_load_dwordx2 s[8:9], s[0:1], 80")
    A("s_lshl_b32 s3, s2, 3")
    A("v_lshrrev_b32 v1, 5, v0")
    A("v_add_u32 v1, s3, v1")
    A("v_and_b32 v2, 31, v0")
    A("v_mul_u32_u24 v3, 36, v2")
    A("s_waitcnt lgkmcnt(0)")
    srd(A, 12, 8, SZ_QKV, WS_QKV)
    srd(A, 16, 8, SZ_O, WS_O)
    Q, K, V_ = 8, 20, 92
    A("v_mul_u32_u24 v4, 3456, v1")
    A("v_add_u32 v4, v4, v3")
    def ld(base, addr, off):
        A.vm(f"buffer_load_dwordx4 {v(base,4)}, {addr}, s[12:15], 0 offen offset:{off}")
        A.vm(f"buffer_load_dwordx4 {v(base+4,4)}, {addr}, s[12:15], 0 offen offset:{off+16}")
        return A.vm(f"buffer_load_dword v{base+8}, {addr}, s[12:15], 0 offen offset:{off+32}")
    K = 20; V_ = 100; ST = 10
    tq = ld(Q, "v4", 0)
    tk = []; tv = []
    for w in range(8):
        A(f"v_subrev_u32 v5, {2*w}, v1")
        A("v_max_i32 v5, 0, v5")
        A("v_mul_u32_u24 v5, 3456, v5")
        A(f"v_add_u32 v{180+w}, v5, v3")
    for w in range(8):
        tk.append(ld(K + ST * w, f"v{180+w}", 1152))
    for w in range(8):
        tv.append(ld(V_ + ST * w, f"v{180+w}", 2304))
    LG = 190
    for w in range(8):
        A.wait_vm(tk[w])
        A(f"v_mov_b32 v{LG+w}, 0")
        for d in range(9):
            A(f"v_dot2_f32_bf16 v{LG+w}, v{Q+d}, v{K+ST*w+d}, v{LG+w}")
    sc = (18 ** -0.5) * 1.4426950408889634
    A(f"v_mov_b32 v6, {f32(-1e9)}")
    for w in range(8):
        A(f"v_mul_f32 v{LG+w}, {f32(sc)}, v{LG+w}")
    for w in range(1, 8):
        A(f"v_cmp_gt_u32 vcc, {2*w}, v1")
        A(f"v_cndmask_b32 v{LG+w}, v{LG+w}, v6, vcc")
    A(f"v_max3_f32 v7, v{LG}, v{LG+1}, v{LG+2}")
    A(f"v_max3_f32 v7, v7, v{LG+3}, v{LG+4}")
    A(f"v_max3_f32 v7, v7, v{LG+5}, v{LG+6}")
    A(f"v_max_f32 v7, v7, v{LG+7}")
    for w in range(8): A(f"v_sub_f32 v{LG+w}, v{LG+w}, v7")
    for w in range(8): A(f"v_exp_f32 v{LG+w}, v{LG+w}")
    A(f"v_add_f32 v7, v{LG}, v{LG+1}")
    for w in range(2, 8): A(f"v_add_f32 v7, v7, v{LG+w}")
    A("v_rcp_f32 v7, v7")
    for w in range(8): A(f"v_mul_f32 v{LG+w}, v{LG+w}, v7")
    O = 200
    A("s_mov_b32 s20, 0xffff0000")
    for w in range(8):
        A.wait_vm(tv[w])
        for d in range(9):
            x = V_ + ST * w + d
            A(f"v_lshlrev_b32 v5, 16, v{x}")
            A(f"v_and_b32 v6, s20, v{x}")
            if w == 0:
                A(f"v_mul_f32 v{O+2*d}, v5, v{LG}")
                A(f"v_mul_f32 v{O+2*d+1}, v6, v{LG}")
            else:
                A(f"v_fmac_f32 v{O+2*d}, v5, v{LG+w}")
                A(f"v_fmac_f32 v{O+2*d+1}, v6, v{LG+w}")
    A("v_lshrrev_b32 v5, 4, v1")
    A("v_mul_u32_u24 v5, 18432, v5")
    A("v_and_b32 v6, 15, v1")
    A("v_lshl_add_u32 v5, v6, 4, v5")
    A("v_mul_u32_u24 v3, 18, v2")
    for d in range(9):
        A(f"v_cvt_pk_bf16_f32 v{20+d}, v{O+2*d}, v{O+2*d+1}")
        A(f"v_add_u32 v6, {2*d}, v3")
        A("v_lshrrev_b32 v7, 5, v6")
        A("v_lshl_add_u32 v4, v7, 10, v5")
        A("v_bfe_u32 v7, v6, 2, 2")
        A("v_lshl_add_u32 v4, v7, 8, v4")
        A("v_bfe_u32 v7, v6, 4, 1")
        A("v_lshl_add_u32 v4, v7, 3, v4")
        A("v_and_b32 v7, 3, v6")
        A("v_lshl_add_u32 v4, v7, 1, v4")
        A.vm(f"buffer_store_dword v{20+d}, v4, s[16:19], 0 offen")
    A.label(L("end"))
    A("s_endpgm")
    return A.text(), kernel_desc(name, 224, 32), f"; @launch kernel={name} grid=(256,1,1) block=(256,1,1) lds=0"
```

```python
from asmlib import *
from layout import *

SLOT = 34816
NST = 32

def gen_k3(name="k3_kernel", opt=None):
    opt = opt or {}
    no_mfma = opt.get("no_mfma", False)
    no_read = opt.get("no_read", False)
    no_load = opt.get("no_load", False)
    no_a = opt.get("no_a", False)
    no_b = opt.get("no_b", False)
    st_ = opt.get("stamp", None)
    NL = (0 if no_a else 4) + (0 if no_b else 5)
    A = Asm()
    kernel_header(A, name)
    L = lambda s_: f"{name}_{s_}"
    A(f"s_cmp_ge_u32 s2, 256")
    A(f"s_cbranch_scc1 {L('end')}")
    if st_ is not None: stamp(A, 50)
    A("s_load_dwordx4 s[4:7], s[0:1], 40")
    A("s_load_dwordx2 s[8:9], s[0:1], 80")
    A("s_and_b32 s35, s2, 7")
    A("s_lshr_b32 s36, s2, 3")
    A("s_lshr_b32 s32, s35, 2")
    A("s_lshl_b32 s32, s32, 3")
    A("s_lshr_b32 s37, s36, 2")
    A("s_add_u32 s32, s32, s37")
    A("s_and_b32 s33, s35, 3")
    A("s_lshl_b32 s33, s33, 2")
    A("s_and_b32 s37, s36, 3")
    A("s_add_u32 s33, s33, s37")
    if opt.get("same"):
        A("s_mov_b32 s32, s35")
        A("s_mov_b32 s33, s35")
    if opt.get("map") == "4x8":
        A("s_lshr_b32 s32, s35, 1")
        A("s_lshl_b32 s32, s32, 2")
        A("s_lshr_b32 s37, s36, 3")
        A("s_add_u32 s32, s32, s37")
        A("s_and_b32 s33, s35, 1")
        A("s_lshl_b32 s33, s33, 3")
        A("s_and_b32 s37, s36, 7")
        A("s_add_u32 s33, s33, s37")
    A("v_lshrrev_b32 v1, 6, v0")
    A("v_and_b32 v0, 63, v0")
    A("v_readfirstlane_b32 s34, v1")
    A("s_waitcnt lgkmcnt(0)")
    srd(A, 12, 4, S * S * 2)
    A(f"s_mul_i32 s37, s33, {NST * 18432}")
    A(f"s_add_u32 s16, s8, s37")
    A(f"s_addc_u32 s17, s9, 0")
    if WS_Z2N:
        A(f"s_add_u32 s16, s16, {WS_Z2N}")
        A(f"s_addc_u32 s17, s17, 0")
    A(f"s_mov_b32 s18, {NST * 18432}")
    A("s_mov_b32 s19, 0x00020000")
    srd(A, 20, 8, SZ_Z, WS_Z1)
    srd(A, 24, 8, SZ_Z, WS_Y)
    srd(A, 28, 6, S * 2)
    A("s_cmp_ge_u32 s34, 4")
    A(f"s_cbranch_scc1 {L('loader')}")

    ACC = 112
    WF = [8, 24]
    ZF = [40, 76]
    acc = lambda a_, f: ACC + (a_ * 9 + f) * 4
    A("s_and_b32 s38, s34, 1")
    A("s_lshr_b32 s39, s34, 1")
    A("v_and_b32 v1, 15, v0")
    A("s_lshl_b32 s40, s32, 7")
    A("s_lshl_b32 s41, s38, 6")
    A("s_add_u32 s40, s40, s41")
    A("v_add_u32 v2, s40, v1")
    A("v_lshlrev_b32 v2, 1, v2")
    for a_ in range(4):
        A(f"buffer_load_ushort v{8+a_}, v2, s[28:31], 0 offen offset:{a_*32}")
    A("v_lshrrev_b32 v3, 4, v0")
    A("s_lshl_b32 s41, s39, 2")
    A("v_add_u32 v3, s41, v3")
    A("v_and_b32 v4, 7, v0")
    A("v_xor_b32 v3, v3, v4")
    A("v_lshlrev_b32 v3, 4, v3")
    A("v_lshlrev_b32 v4, 7, v1")
    A("v_add_u32 v3, v3, v4")
    A("s_lshl_b32 s41, s38, 13")
    A("v_add_u32 v1, s41, v3")
    A(f"v_add_u32 v2, {2*SLOT}, v1")
    A("s_mul_i32 s41, s39, 9216")
    A("s_add_u32 s41, s41, 16384")
    A("v_lshlrev_b32 v3, 3, v0")
    A("v_add_u32 v3, s41, v3")
    A(f"v_add_u32 v4, {2*SLOT}, v3")
    A("s_waitcnt vmcnt(0)")
    A("s_cmp_eq_u32 s39, 0")
    A("s_cselect_b32 s42, -1, 0")
    for a_ in range(4):
        A(f"v_lshlrev_b32 v{8+a_}, 16, v{8+a_}")
        A(f"v_and_b32 v{8+a_}, s42, v{8+a_}")
    for a_ in range(4):
        for f in range(9):
            for r in range(4):
                A(f"v_mov_b32 v{acc(a_,f)+r}, v{8+a_}")

    def reads(st, slot):
        out = []
        wa = "v1" if slot < 2 else "v2"
        za = "v3" if slot < 2 else "v4"
        so = (slot & 1) * SLOT
        def z(f):
            out.append(f"ds_read_b64_tr_b16 {v(ZF[st]+4*f,2)}, {za} offset:{so + f*1024}")
            out.append(f"ds_read_b64_tr_b16 {v(ZF[st]+4*f+2,2)}, {za} offset:{so + f*1024 + 512}")
        z(0)
        for a_ in range(4):
            out.append(f"ds_read_b128 {v(WF[st]+4*a_,4)}, {wa} offset:{so + a_*2048}")
        for f in range(1, 9):
            z(f)
        return out

    A("s_barrier")
    for r in reads(0, 0):
        A(r)
    A("s_waitcnt lgkmcnt(0)")
    A("s_barrier")
    A("s_mov_b32 s43, 0")
    if opt.get("trace"):
        srd(A, 76, 8, 1 << 20, WS_DIAG + (1 << 20))
        A("s_lshl_b32 s72, s2, 8")
        A("s_lshl_b32 s73, s34, 6")
        A("s_add_u32 s72, s72, s73")
        A("v_mov_b32 v5, s72")
    if st_ is not None:
        stamp(A, 52)
        A("s_memtime s[64:65]")
    A.raw(".p2align 6")
    A.label(L("cloop"))
    for u in range(4):
        st = u & 1
        rd = [] if no_read else reads(st ^ 1, (u + 1) & 3)
        if opt.get("dblread"):
            rd = rd + rd
        n = 0
        for f in range(9):
            for a_ in range(4):
                if not no_mfma:
                    A(f"v_mfma_f32_16x16x32_bf16 {v(acc(a_,f),4)}, {v(ZF[st]+4*f,4)}, {v(WF[st]+4*a_,4)}, {v(acc(a_,f),4)}")
                if (n % 3 != 2 or opt.get("dblread")) and rd:
                    A(rd.pop(0))
                n += 1
        assert not rd
        if u == 2 and opt.get("trace"):
            A("s_memrealtime s[68:69]")
            A("s_memtime s[70:71]")
        if u == 3:
            if opt.get("trace"):
                A("v_mov_b32 v6, s68")
                A("v_mov_b32 v7, s70")
                A("s_lshl_b32 s72, s43, 3")
                A("buffer_store_dwordx2 v[6:7], v5, s[76:79], s72 offen")
            A("s_add_u32 s43, s43, 1")
            A(f"s_cmp_lt_u32 s43, {NST//4}")
        A("s_waitcnt lgkmcnt(0)")
        A("s_barrier")
    A(f"s_cbranch_scc1 {L('cloop')}")

    if st_ is not None:
        stamp(A, 54)
        A("s_memtime s[66:67]")
    XB = 40960
    A("s_mul_i32 s41, s34, 18432")
    A(f"s_add_u32 s41, s41, {XB}")
    A("v_lshlrev_b32 v5, 4, v0")
    A("v_add_u32 v6, s41, v5")
    A("s_xor_b32 s42, s34, 2")
    A("s_mul_i32 s42, s42, 18432")
    A(f"s_add_u32 s42, s42, {XB}")
    A("v_add_u32 v7, s42, v5")
    A("s_cmp_eq_u32 s39, 0")
    A(f"s_cbranch_scc0 {L('j1')}")
    A("s_nop 7")
    for jj in range(2):
        if jj == 1:
            A.label(L("j1"))
            A("s_nop 7")
        keep = [0, 1] if jj == 0 else [2, 3]
        send = [2, 3] if jj == 0 else [0, 1]
        n = 0
        for a_ in send:
            for f in range(9):
                A(f"ds_write_b128 v6, {v(acc(a_,f),4)} offset:{n*1024}")
                n += 1
        A("s_and_b32 s41, s33, 1")
        A("s_mul_i32 s42, s38, 20480")
        A("s_lshl_b32 s44, s41, 3")
        A("s_add_u32 s44, s44, s42")
        A("s_cmp_eq_u32 s41, 0")
        A("s_cselect_b32 s45, 8, 1024")
        A("s_add_u32 s45, s45, s42")
        A("v_add_u32 v1, s44, v5")
        A("v_add_u32 v2, s45, v5")
        A("s_lshl_b32 s46, s32, 3")
        A("s_lshl_b32 s47, s38, 2")
        A("s_add_u32 s46, s46, s47")
        A("s_mul_i32 s46, s46, 72")
        A("s_mul_i32 s47, s33, 9")
        A("s_lshr_b32 s47, s47, 1")
        A("s_add_u32 s46, s46, s47")
        A("s_lshl_b32 s46, s46, 10")
        A("s_sub_u32 s46, s46, s42")
        A("v_add_u32 v3, s46, v1")
        A("v_add_u32 v4, s46, v2")
        A("s_waitcnt lgkmcnt(0)")
        A("s_barrier")
        P = 8
        n = 0
        for a_ in keep:
            for f in range(9):
                A(f"ds_read_b128 {v(P+4*n,4)}, v7 offset:{n*1024}")
                n += 1
        Z1 = acc(send[0], 0)
        n = 0
        for a_ in keep:
            for f in range(9):
                ad = "v1" if f % 2 == 0 else "v2"
                A(f"ds_read_b64 {v(Z1+2*n,2)}, {ad} offset:{a_*5120 + (f//2)*1024}")
                n += 1
        T = Z1 + 36
        n = 0
        for ai, a_ in enumerate(keep):
            for f in range(9):
                if n % 3 == 0:
                    rem = 0 if n >= 0 else 0
                if n == 0:
                    A("s_waitcnt lgkmcnt(0)")
                c = acc(a_, f)
                t = T + (n % 4) * 6
                for r in range(4):
                    A(f"v_add_f32 v{c+r}, v{c+r}, v{P+4*n+r}")
                A(f"v_lshlrev_b32 v{t}, 16, v{Z1+2*n}")
                A(f"v_and_b32 v{t+1}, 0xffff0000, v{Z1+2*n}")
                A(f"v_lshlrev_b32 v{t+2}, 16, v{Z1+2*n+1}")
                A(f"v_and_b32 v{t+3}, 0xffff0000, v{Z1+2*n+1}")
                for r in range(4):
                    A(f"v_mul_f32 v{c+r}, v{c+r}, v{t+r}")
                A(f"v_cvt_pk_bf16_f32 v{t+4}, v{c}, v{c+1}")
                A(f"v_cvt_pk_bf16_f32 v{t+5}, v{c+2}, v{c+3}")
                ad = "v3" if f % 2 == 0 else "v4"
                A(f"s_mov_b32 s47, {a_*72*1024 + (f//2)*1024}")
                A(f"buffer_store_dwordx2 {v(t+4,2)}, {ad}, s[24:27], s47 offen")
                n += 1
        if st_ is not None and jj == 0:
            A("s_cmp_eq_u32 s34, 0")
            A(f"s_cbranch_scc0 {L('end')}")
            stamp_store(A, 8, st_, [50, 52, 54, 64, 66, 56], 60)
        A("s_endpgm")

    A.label(L("loader"))
    A("s_sub_u32 s38, s34, 4")
    A("v_lshrrev_b32 v5, 3, v0")
    A("v_and_b32 v6, 7, v0")
    A("v_xor_b32 v6, v6, v5")
    A("v_lshlrev_b32 v6, 4, v6")
    A("s_lshl_b32 s40, s32, 7")
    A("s_lshl_b32 s41, s38, 5")
    A("s_add_u32 s40, s40, s41")
    A("v_add_u32 v5, s40, v5")
    A("v_lshlrev_b32 v5, 12, v5")
    A("v_add_u32 v1, v5, v6")
    for p in range(1, 4):
        A(f"v_add_u32 v{1+p}, {p*(32768-1024)}, v1")
    A("s_mul_i32 s41, s38, 4608")
    A("v_lshlrev_b32 v5, 4, v0")
    A("v_add_u32 v5, s41, v5")
    A("s_lshl_b32 s40, s38, 12")
    A("s_add_u32 s41, s41, 16384")
    A("s_mov_b32 s42, 0")
    A("s_mov_b32 s43, 0")
    A("s_mov_b32 s44, -1")
    A("s_mov_b32 s45, 0")

    def issue(slot):
        if no_load:
            return
        if opt.get("tovgpr"):
            base = 16 + slot * 40
            for p in range(4):
                A(f"buffer_load_dwordx4 {v(base+4*p,4)}, v{1+p}, s[12:15], s42 offen offset:{p*1024}")
            A("s_mov_b64 exec, s[44:45]")
            A(f"buffer_load_dwordx4 {v(base+16,4)}, v5, s[16:19], s43 offen")
            A("s_mov_b64 exec, -1")
            for p in range(4):
                A(f"buffer_load_dwordx4 {v(base+20+4*p,4)}, v5, s[16:19], s43 offen offset:{512+p*1024}")
            A("s_add_u32 s42, s42, 128")
            A("s_add_u32 s43, s43, 18432")
            return
        A(f"s_add_u32 m0, s40, {slot*SLOT}")
        A("s_nop 0")
        for p in range(4):
            if not no_a:
                A(f"buffer_load_dwordx4 v{1+p}, s[12:15], s42 offen offset:{p*1024} lds")
        A(f"s_add_u32 m0, s41, {slot*SLOT}")
        if not no_b:
            A("s_mov_b64 exec, s[44:45]")
            A(f"buffer_load_dwordx4 v5, s[16:19], s43 offen lds")
            A("s_mov_b64 exec, -1")
            for p in range(4):
                A(f"buffer_load_dwordx4 v5, s[16:19], s43 offen offset:{512+p*1024} lds")
        A("s_add_u32 s42, s42, 128")
        A("s_add_u32 s43, s43, 18432")

    for st in range(4):
        issue(st)
    A(f"s_waitcnt vmcnt({3*NL})")
    A("s_barrier")
    A(f"s_waitcnt vmcnt({2*NL})")
    A("s_barrier")
    A("s_mov_b32 s46, 0")
    A.label(L("lloop"))
    for u in range(4):
        issue(u)
        if u == 3:
            A("s_add_u32 s46, s46, 1")
            A(f"s_cmp_lt_u32 s46, {NST//4 - 1}")
        A(f"s_waitcnt vmcnt({2*NL})")
        A("s_barrier")
    A(f"s_cbranch_scc1 {L('lloop')}")
    A(f"s_waitcnt vmcnt({NL})")
    A("s_barrier")
    A("s_lshl_b32 s46, s32, 3")
    A("s_lshl_b32 s47, s38, 1")
    A("s_add_u32 s46, s46, s47")
    A("s_mul_i32 s46, s46, 72")
    A("s_mul_i32 s47, s33, 9")
    A("s_lshr_b32 s47, s47, 1")
    A("s_add_u32 s46, s46, s47")
    A("s_lshl_b32 s46, s46, 10")
    A("v_lshlrev_b32 v5, 4, v0")
    A("s_mul_i32 s47, s38, 10240")
    for tt in range(2):
        A(f"s_add_u32 m0, s47, {tt*5120}")
        A("s_nop 0")
        for p in range(4):
            A(f"buffer_load_dwordx4 v5, s[20:23], s46 offen offset:{p*1024} lds")
        A(f"s_add_u32 m0, s47, {tt*5120+4096}")
        A("s_add_u32 s46, s46, 4096")
        A(f"buffer_load_dwordx4 v5, s[20:23], s46 offen lds")
        A(f"s_add_u32 s46, s46, {72*1024-4096}")
    A("s_waitcnt vmcnt(10)")
    A("s_barrier")
    A("s_barrier")
    A("s_waitcnt vmcnt(0)")
    A("s_barrier")
    A.label(L("end"))
    A("s_endpgm")
    return A.text(), kernel_desc(name, 256, 96), f"; @launch kernel={name} grid=(256,1,1) block=(512,1,1) lds=163840"
```

```python
from asmlib import *
from layout import *

SLOT = 17408
NS = 9
NST_S, NST_G = 9, 36
NST = NST_S + NST_G

def gen_k4(name="k4_kernel", opt=None):
    opt = opt or {}
    st_ = opt.get("stamp", None)
    NL = (0 if opt.get("no_a") else 2) + (0 if opt.get("no_w") else 3)
    A = Asm()
    kernel_header(A, name)
    L = lambda s_: f"{name}_{s_}"
    A(f"s_cmp_ge_u32 s2, 256")
    A(f"s_cbranch_scc1 {L('end')}")
    if st_ is not None: stamp(A, 50)
    A("s_load_dwordx2 s[4:5], s[0:1], 0")
    A("s_load_dwordx2 s[6:7], s[0:1], 16")
    A("s_load_dwordx4 s[8:11], s[0:1], 56")
    A("s_load_dwordx2 s[36:37], s[0:1], 80")
    A("s_and_b32 s40, s2, 7")
    A("s_lshr_b32 s41, s2, 3")
    A("s_lshr_b32 s32, s40, 1")
    A("s_lshl_b32 s32, s32, 3")
    A("s_lshr_b32 s42, s41, 2")
    A("s_add_u32 s32, s32, s42")
    A("s_and_b32 s33, s40, 1")
    A("s_lshl_b32 s33, s33, 2")
    A("s_and_b32 s42, s41, 3")
    A("s_add_u32 s33, s33, s42")
    A("v_lshrrev_b32 v1, 6, v0")
    A("v_and_b32 v0, 63, v0")
    A("v_readfirstlane_b32 s34, v1")
    A("s_waitcnt lgkmcnt(0)")
    A("s_cmp_ge_u32 s34, 4")
    A(f"s_cbranch_scc1 {L('loader')}")

    srd(A, 12, 4, S * D * 2)
    srd(A, 16, 10, S * D * 2)
    YF, WF = 8, 16
    ACS, ACG = 40, 80
    XR = 120
    A("s_and_b32 s38, s34, 1")
    A("s_lshr_b32 s39, s34, 1")
    A("s_lshl_b32 s40, s32, 6")
    A("s_lshl_b32 s41, s38, 5")
    A("s_add_u32 s40, s40, s41")
    A("s_lshl_b32 s41, s39, 4")
    A("s_add_u32 s40, s40, s41")
    A("v_and_b32 v1, 15, v0")
    A("v_add_u32 v1, s40, v1")
    A("v_mul_u32_u24 v1, 1152, v1")
    A("v_lshrrev_b32 v2, 4, v0")
    A("v_lshlrev_b32 v2, 3, v2")
    A("s_mul_i32 s41, s33, 144")
    A("v_add3_u32 v5, v1, v2, s41")
    for dt in range(5):
        A(f"buffer_load_dwordx2 {v(XR+2*dt,2)}, v5, s[12:15], 0 offen offset:{dt*32}")
    A("s_lshl_b32 s40, s38, 2")
    A("s_add_u32 s40, s40, s39")
    A("s_lshl_b32 s40, s40, 10")
    A("v_lshlrev_b32 v1, 4, v0")
    A("v_add_u32 v1, s40, v1")
    A("v_lshrrev_b32 v2, 2, v0")
    A("s_lshl_b32 s40, s39, 5")
    A("v_add_u32 v2, s40, v2")
    A("v_mul_u32_u24 v2, 144, v2")
    A("v_and_b32 v3, 3, v0")
    A("v_lshlrev_b32 v3, 3, v3")
    A("v_add_u32 v2, v2, v3")
    A("v_add_u32 v2, 8192, v2")
    for r in range(80):
        A(f"v_mov_b32 v{ACS+r}, 0")
    A("s_mov_b32 s42, 0")
    A("s_mov_b32 s43, 0")

    def body(ACC):
        A("v_add_u32 v3, s42, v1")
        A("v_add_u32 v4, s42, v2")
        A("s_barrier")
        if opt.get("no_compute"):
            A("s_add_u32 s43, s43, 1")
            return
        A(f"ds_read_b128 {v(YF,4)}, v3")
        A(f"ds_read_b128 {v(YF+4,4)}, v3 offset:2048")
        for dt in range(5):
            A(f"ds_read_b64_tr_b16 {v(WF+4*dt,2)}, v4 offset:{dt*32}")
            A(f"ds_read_b64_tr_b16 {v(WF+4*dt+2,2)}, v4 offset:{2304+dt*32}")
        A(f"s_add_u32 s42, s42, {SLOT}")
        A(f"s_cmp_eq_u32 s42, {NS*SLOT}")
        A("s_cselect_b32 s42, 0, s42")
        A("s_add_u32 s43, s43, 1")
        for dt in range(5):
            A(f"s_waitcnt lgkmcnt({8-2*dt})")
            for a_ in range(2):
                c = ACC + (a_ * 5 + dt) * 4
                A(f"v_mfma_f32_16x16x32_bf16 {v(c,4)}, {v(WF+4*dt,4)}, {v(YF+4*a_,4)}, {v(c,4)}")

    if st_ is not None: stamp(A, 52)
    A.label(L("sloop"))
    body(ACS)
    A(f"s_cmp_lt_u32 s43, {NST_S}")
    A(f"s_cbranch_scc1 {L('sloop')}")
    A.label(L("gloop"))
    body(ACG)
    A(f"s_cmp_lt_u32 s43, {NST}")
    A(f"s_cbranch_scc1 {L('gloop')}")
    if st_ is not None: stamp(A, 54)
    A("s_barrier")
    A("s_mul_i32 s40, s34, 10240")
    A("v_lshlrev_b32 v1, 4, v0")
    A("v_add_u32 v2, s40, v1")
    A("s_xor_b32 s41, s34, 2")
    A("s_mul_i32 s41, s41, 10240")
    A("v_add_u32 v3, s41, v1")
    A("s_cmp_eq_u32 s39, 0")
    A(f"s_cbranch_scc0 {L('j1')}")
    for jj in range(2):
        if jj == 1:
            A.label(L("j1"))
        A("s_nop 4")
        keep, send = jj, 1 - jj
        n = 0
        for ACC in (ACS, ACG):
            for dt in range(5):
                A(f"ds_write_b128 v2, {v(ACC+(send*5+dt)*4,4)} offset:{n*1024}")
                n += 1
        A("s_waitcnt lgkmcnt(0)")
        A("s_barrier")
        P = 132
        for n in range(10):
            A(f"ds_read_b128 {v(P+4*n,4)}, v3 offset:{n*1024}")
        A("s_mov_b32 s40, 0xbfb8aa3b")
        A("s_waitcnt vmcnt(0) lgkmcnt(0)")
        T = 8
        for dt in range(5):
            cs = ACS + (keep * 5 + dt) * 4
            cg = ACG + (keep * 5 + dt) * 4
            for r in range(4):
                A(f"v_add_f32 v{cg+r}, v{cg+r}, v{P+20+4*dt+r}")
            for r in range(4):
                A(f"v_mul_f32 v{T+r}, s40, v{cg+r}")
            for r in range(4):
                A(f"v_exp_f32 v{T+r}, v{T+r}")
            for r in range(4):
                A(f"v_add_f32 v{cs+r}, v{cs+r}, v{P+4*dt+r}")
            for r in range(4):
                A(f"v_add_f32 v{T+r}, 1.0, v{T+r}")
            for r in range(4):
                A(f"v_rcp_f32 v{T+r}, v{T+r}")
            A(f"v_lshlrev_b32 v{T+4}, 16, v{XR+2*dt}")
            A(f"v_and_b32 v{T+5}, 0xffff0000, v{XR+2*dt}")
            A(f"v_lshlrev_b32 v{T+6}, 16, v{XR+2*dt+1}")
            A(f"v_and_b32 v{T+7}, 0xffff0000, v{XR+2*dt+1}")
            for r in range(4):
                A(f"v_mul_f32 v{T+r}, v{T+r}, v{cg+r}")
            for r in range(4):
                A(f"v_fma_f32 v{T+r}, v{T+r}, v{cs+r}, v{T+4+r}")
            A(f"v_cvt_pk_bf16_f32 v{XR+2*dt}, v{T}, v{T+1}")
            A(f"v_cvt_pk_bf16_f32 v{XR+2*dt+1}, v{T+2}, v{T+3}")
            if dt == 4:
                A("s_mov_b32 exec_hi, 0")
            A(f"buffer_store_dwordx2 {v(XR+2*dt,2)}, v5, s[16:19], 0 offen offset:{dt*32}")
        if st_ is not None and jj == 0:
            A("s_mov_b64 exec, -1")
            A("s_cmp_eq_u32 s34, 0")
            A(f"s_cbranch_scc0 {L('end')}")
            stamp_store(A, 36, st_, [50, 52, 54, 56], 60)
        A("s_endpgm")

    A.label(L("loader"))
    srd(A, 12, 36, SZ_O, WS_O)
    srd(A, 16, 6, D * D * 2)
    srd(A, 20, 36, SZ_Z, WS_Y)
    srd(A, 24, 8, FH * D * 2)
    A("s_sub_u32 s38, s34, 4")
    A("s_lshl_b32 s40, s32, 2")
    A("s_add_u32 s40, s40, s38")
    A("v_lshlrev_b32 v6, 4, v0")
    A(f"s_mul_i32 s41, s40, {18*1024}")
    A("v_add_u32 v1, s41, v6")
    A(f"s_mul_i32 s41, s40, {72*1024}")
    A("v_add_u32 v2, s41, v6")
    A("s_mul_i32 s40, s38, 144")
    A("s_mul_i32 s41, s33, 144")
    for p in range(3):
        A(f"v_add_u32 v6, s40, v0")
        if p:
            A(f"v_add_u32 v6, {64*p}, v6")
        A("v_mul_u32_u24 v7, 7282, v6")
        A("v_lshrrev_b32 v7, 16, v7")
        A("v_mul_u32_u24 v8, 9, v7")
        A("v_sub_u32 v6, v6, v8")
        A("v_mul_u32_u24 v7, 1152, v7")
        A("v_lshlrev_b32 v6, 4, v6")
        A(f"v_add3_u32 v{3+p}, v7, v6, s41")
        if p:
            A(f"v_subrev_u32 v{3+p}, {1024*p}, v{3+p}")
    A("s_lshl_b32 s40, s38, 11")
    A("s_mul_i32 s41, s38, 2304")
    A("s_add_u32 s41, s41, 8192")
    A("s_mov_b32 s42, 0")
    A("s_mov_b32 s43, 0")
    A("s_mov_b32 s44, 0xffff")
    A("s_mov_b32 s45, 0")
    A("s_mov_b32 s46, 0")

    def issue(sa, sw, va):
        A("s_add_u32 m0, s40, s46")
        A("s_add_u32 s47, s41, s46")
        if not opt.get("no_a"):
            A(f"buffer_load_dwordx4 {va}, s[{sa}:{sa+3}], s42 offen lds")
            A(f"buffer_load_dwordx4 {va}, s[{sa}:{sa+3}], s42 offen offset:1024 lds")
        A("s_mov_b32 m0, s47")
        A("s_add_u32 s42, s42, 2048")
        if not opt.get("no_w"):
            A(f"buffer_load_dwordx4 v3, s[{sw}:{sw+3}], s43 offen lds")
            A(f"buffer_load_dwordx4 v4, s[{sw}:{sw+3}], s43 offen offset:1024 lds")
            A("s_mov_b64 exec, s[44:45]")
            A(f"buffer_load_dwordx4 v5, s[{sw}:{sw+3}], s43 offen offset:2048 lds")
            A("s_mov_b64 exec, -1")
        A(f"s_add_u32 s43, s43, {64*1152}")
        A(f"s_add_u32 s46, s46, {SLOT}")
        A(f"s_cmp_eq_u32 s46, {NS*SLOT}")
        A("s_cselect_b32 s46, 0, s46")

    A("s_mov_b32 s48, 0")
    A.label(L("ploop"))
    issue(12, 16, "v1")
    A("s_add_u32 s48, s48, 1")
    A(f"s_cmp_lt_u32 s48, {NST_S}")
    A(f"s_cbranch_scc1 {L('ploop')}")
    A("s_mov_b32 s42, 0")
    A("s_mov_b32 s43, 0")
    A(f"s_waitcnt vmcnt({NL*8})")
    A("s_barrier")
    A(f"s_waitcnt vmcnt({NL*7})")
    A("s_barrier")
    A("s_mov_b32 s48, 0")
    A.label(L("lloop"))
    issue(20, 24, "v2")
    A("s_add_u32 s48, s48, 1")
    A(f"s_cmp_lt_u32 s48, {NST_G}")
    A(f"s_waitcnt vmcnt({NL*7})")
    A("s_barrier")
    A(f"s_cbranch_scc1 {L('lloop')}")
    for k in range(38, NST):
        A(f"s_waitcnt vmcnt({NL*(NST-1-k)})")
        A("s_barrier")
    A("s_barrier")
    A.label(L("end"))
    A("s_endpgm")
    return A.text(), kernel_desc(name, 176, 80), f"; @launch kernel={name} grid=(256,1,1) block=(512,1,1) lds={NS*SLOT+1024}"
```

```python
S, D, F, FH = 2048, 576, 4608, 2304
WS_Z2N = 0
SZ_Z = S * FH * 2
WS_Z1 = WS_Z2N + SZ_Z
WS_Y = WS_Z1 + SZ_Z
WS_QKV = WS_Y + SZ_Z
SZ_QKV = S * 1728 * 2
WS_O = WS_QKV + SZ_QKV
SZ_O = S * D * 2
WS_STAT = WS_O + SZ_O
WS_END = WS_STAT + 16 * 16 * 128 * 8
WS_DIAG = 64 << 20
```

```python
import sys; sys.path.insert(0,"dev")
import gen
from k1 import gen_k1
from k3 import gen_k3
from k4 import gen_k4
OUT="recurrent_scan__sliding_local_dilated__mixer_gmlp__prompt.s"
gen.build([gen_k1(), gen_k3(), gen_k4()], OUT)
gen.build([gen_k1(opt=dict(stamp=0)), gen_k3(opt=dict(stamp=1)), gen_k4(opt=dict(stamp=2))], "all.s")
```

```python
from asmlib import *
from layout import *
import struct

def f32(x): return "0x%08x" % struct.unpack("<I", struct.pack("<f", x))[0]

SLOT = 18432
XA = 6 * SLOT
XP = 416
SA = 147456
NA = SA + 8192
C1 = -2.0 * 0.7978845608028654 * 1.4426950408889634
C2 = C1 * 0.044715

V_TR, V_D0, V_C1, V_SE, V_SO = 1, 2, 5, 6, 7
V_ST = 8
T = 12
BF = [20, 24, 28, 252]
ACC = 32
PP = 72
AX = 108
def XRG(n):
    if n < 6: return ACC + 4 * n
    if n < 9: return AX + (12 + n - 6) * 4
    return PP + 4 * (n - 9)

def gen_k1(name="k1_kernel", opt=None):
    opt = opt or {}
    st_ = opt.get("stamp", None)
    rate = opt.get("rate", [3, 4, 3])
    PUB_STAGE = opt.get("pub", 17)
    POLL_STAGE = opt.get("poll", 21)
    FIN_STAGE = opt.get("fin", 25)
    TRR = [4, 5, 6, 7, 8, 9, 12, 13, 14, 15, 90, 96, 97, 98, 99]
    TRS = opt.get("trs", [1, 2, 3, 4, 5, 6, 7, 8, 9, 10, 11, 12, 13, 14, 15])
    H = Asm()
    kernel_header(H, name)
    L = lambda s_: f"{name}_{s_}"
    H("s_cmp_ge_u32 s2, 256")
    H(f"s_cbranch_scc1 {L('end')}")
    H("s_load_dwordx4 s[4:7], s[0:1], 0")
    H("s_load_dwordx4 s[8:11], s[0:1], 32")
    H("s_load_dwordx4 s[44:47], s[0:1], 72")
    H("s_memrealtime s[80:81]")
    H("s_load_dwordx2 s[72:73], s[0:1], 16")
    H("s_load_dwordx2 s[74:75], s[0:1], 56")
    H("s_and_b32 s50, s2, 7")
    H("s_lshr_b32 s51, s2, 3")
    H("s_lshr_b32 s48, s50, 2")
    H("s_lshl_b32 s48, s48, 3")
    H("s_lshr_b32 s52, s51, 2")
    H("s_add_u32 s48, s48, s52")
    H("s_and_b32 s49, s50, 3")
    H("s_lshl_b32 s49, s49, 2")
    H("s_and_b32 s52, s51, 3")
    H("s_add_u32 s49, s49, s52")
    H("v_lshrrev_b32 v1, 6, v0")
    H("v_and_b32 v0, 63, v0")
    H("v_readfirstlane_b32 s50, v1")
    H("v_lshrrev_b32 v1, 2, v0")
    H("s_lshl_b32 s52, s48, 7")
    H("s_lshl_b32 s53, s50, 4")
    H("s_add_u32 s52, s52, s53")
    H("v_add_u32 v2, s52, v1")
    H("v_mul_u32_u24 v2, 1152, v2")
    H("v_and_b32 v3, 3, v0")
    H("v_lshl_add_u32 v12, v3, 4, v2")
    H("s_and_b32 s51, s50, 3")
    H("s_lshl_b32 s52, s50, 3")
    H("s_mul_i32 s53, s49, 288")
    for p in range(3):
        H(f"v_add_u32 v13, {64*p}, v0")
        H("v_mul_u32_u24 v14, 3641, v13")
        H("v_lshrrev_b32 v14, 16, v14")
        H("v_mul_u32_u24 v15, 18, v14")
        H("v_sub_u32 v13, v13, v15")
        H("v_add_u32 v14, s52, v14")
        H("v_mul_u32_u24 v14, 9216, v14")
        H("v_lshlrev_b32 v13, 4, v13")
        H(f"v_add3_u32 v{V_D0+p}, v14, v13, s53")
        if p: H(f"v_subrev_u32 v{V_D0+p}, {1024*p}, v{V_D0+p}")
    H("s_mul_i32 s54, s50, 2304")
    H("s_mul_i32 s55, s50, 1792")
    H("s_mov_b32 s56, 0xffff")
    H("s_mov_b32 s57, 0")
    H("s_mov_b32 s58, -1")
    H("s_mov_b32 s59, 0xffff")
    H("s_waitcnt lgkmcnt(0)")
    srd(H, 12, 4, S * D * 2)
    text = H.text()

    A = Stream()
    xt = [A.vm(f"buffer_load_dwordx4 {v(XRG(n),4)}, v12, s[12:15], 0 offen offset:{n*64}") for n in range(18)]
    srd(A, 16, 8, D * F * 2)
    srd(A, 20, 6, D * 1728 * 2)

    dma_tok = {}; slot_of = {}
    def dma_items(A, st, slot):
        slot_of[st] = slot
        if opt.get("no_dma"): return []
        def a0():
            if st < 18:
                A(f"s_add_u32 m0, s54, {slot*SLOT}")
                A(f"s_mov_b32 s60, {(4608 if st < 9 else 0) + (st % 9) * 64 * 9216}")
                A.vm(f"buffer_load_dwordx4 v{V_D0}, s[16:19], s60 offen lds")
            else:
                A(f"s_add_u32 m0, s55, {slot*SLOT}")
                A(f"s_mov_b32 s60, {(st - 18) * 64 * 3456}")
                A.vm(f"buffer_load_dwordx4 v{V_D0}, s[20:23], s60 offen lds")
        def a1():
            A.vm(f"buffer_load_dwordx4 v{V_D0+1}, s[16:19], s60 offen offset:1024 lds")
        def a2():
            if st < 18:
                A("s_mov_b64 exec, s[56:57]")
                dma_tok[st] = A.vm(f"buffer_load_dwordx4 v{V_D0+2}, s[16:19], s60 offen offset:2048 lds")
            else:
                A("s_mov_b64 exec, s[58:59]")
                dma_tok[st] = A.vm(f"buffer_load_dwordx4 v{V_D0+1}, s[20:23], s60 offen offset:1024 lds")
            A("s_mov_b64 exec, -1")
        return [a0, a1, a2] if st < 18 else [a0, a2]
    def dma(A, st, slot):
        for it in dma_items(A, st, slot): it()
    NI = 6
    NI0 = opt.get("ni0", 2)
    for st in range(NI0):
        dma(A, st, st)
    srd(A, 24, 46, SZ_Z, WS_Z2N)
    srd(A, 28, 46, SZ_Z, WS_Z1)
    srd(A, 32, 46, SZ_QKV, WS_QKV)
    srd(A, 36, 46, SZ_STAT, WS_STAT)
    srd(A, 40, 44, 256)
    A("s_or_b32 s71, s80, 1")
    A(f"v_mov_b32 v{V_SE}, s71")
    A("s_lshl_b32 s52, s50, 6")
    A("s_lshl_b32 s53, s49, 9")
    A("s_add_u32 s52, s52, s53")
    A("v_add_u32 v13, s52, v0")
    A("v_lshlrev_b32 v13, 12, v13")
    A("s_lshl_b32 s3, s48, 2")
    A.vm(f"buffer_store_dword v{V_SE}, v13, s[40:43], s3 offen sc1")
    tok_nonce = None
    A("s_mov_b32 s61, 0x3f803f80")
    A("s_mov_b32 s62, 0xffff0000")
    A("s_lshl_b32 s52, s50, 4")
    A("v_add_u32 v13, s52, v1")
    A(f"v_mul_u32_u24 v13, {XP}, v13")
    A("v_and_b32 v15, 1, v0")
    A("v_lshlrev_b32 v15, 5, v15")
    A("v_and_b32 v16, 2, v0")
    A("v_lshlrev_b32 v16, 2, v16")
    A("v_add3_u32 v13, v13, v15, v16")
    A(f"v_add_u32 v13, {XA}, v13")
    A("v_and_b32 v14, 15, v0")
    A("s_lshl_b32 s52, s51, 5")
    A("v_add_u32 v14, s52, v14")
    A(f"v_mul_u32_u24 v14, {XP}, v14")
    A("v_lshrrev_b32 v15, 4, v0")
    A("v_lshl_add_u32 v14, v15, 4, v14")
    A(f"v_add_u32 v14, {XA}, v14")
    A(f"v_mul_u32_u24 v{V_TR}, 288, v1")
    A("v_and_b32 v15, 3, v0")
    A(f"v_lshl_add_u32 v{V_TR}, v15, 3, v{V_TR}")
    for r in range(4):
        A(f"v_mov_b32 v{V_ST+r}, 0")
    if st_ is not None:
        A.wait_vm(xt[17]); stamp(A, 96)
    for n in range(18):
        A.wait_vm(xt[n])
        for r in range(4):
            x = XRG(n) + r
            A(f"v_dot2_f32_bf16 v{V_ST+(r&1)*2}, v{x}, s61, v{V_ST+(r&1)*2}")
            A(f"v_dot2_f32_bf16 v{V_ST+(r&1)*2+1}, v{x}, v{x}, v{V_ST+(r&1)*2+1}")
    A(f"v_add_f32 v{V_ST}, v{V_ST}, v{V_ST+2}")
    A(f"v_add_f32 v{V_ST+1}, v{V_ST+1}, v{V_ST+3}")
    for qp in ("[1,0,3,2]", "[2,3,0,1]"):
        A(f"v_add_f32_dpp v{V_ST}, v{V_ST}, v{V_ST} quad_perm:{qp} row_mask:0xf bank_mask:0xf")
        A(f"v_add_f32_dpp v{V_ST+1}, v{V_ST+1}, v{V_ST+1} quad_perm:{qp} row_mask:0xf bank_mask:0xf")
    A(f"v_mul_f32 v{V_ST}, {f32(1.0/576)}, v{V_ST}")
    A(f"v_mul_f32 v{V_ST+1}, {f32(1.0/576)}, v{V_ST+1}")
    A(f"v_fma_f32 v{V_ST+1}, -v{V_ST}, v{V_ST}, v{V_ST+1}")
    A(f"v_max_f32 v{V_ST+1}, 0, v{V_ST+1}")
    A(f"v_add_f32 v{V_ST+1}, {f32(1e-5)}, v{V_ST+1}")
    A(f"v_rsq_f32 v{V_ST+2}, v{V_ST+1}")
    A(f"v_mul_f32 v{V_ST}, -v{V_ST}, v{V_ST+2}")
    if st_ is not None: stamp(A, 98); A("s_waitcnt lgkmcnt(0)")
    late_dma = list(range(NI0, NI))
    def norm_ins(n):
        out = []
        for r in range(0, 4, 2):
            for e in range(2):
                x = XRG(n) + r + e; t = 16 + e * 2
                out.append(f"v_lshlrev_b32 v{t}, 16, v{x}")
                out.append(f"v_and_b32 v{t+1}, s62, v{x}")
            for e in range(4):
                out.append(f"v_fma_f32 v{16+e}, v{16+e}, v{V_ST+2}, v{V_ST}")
            for e in range(2):
                x = XRG(n) + r + e; t = 16 + e * 2
                out.append(f"v_cvt_pk_bf16_f32 v{x}, v{t}, v{t+1}")
        return out
    def xwrite(A, n):
        x = XRG(n)
        o = (n % 6) * 8
        return A.lg(f"ds_write2_b64 v13, {v(x,2)}, {v(x+2,2)} offset0:{o} offset1:{o+2}")
    def xread(A, rnd):
        tok = None
        for c in range(6):
            for rt in range(2):
                tok = A.lg(f"ds_read_b128 {v(AX+(rt*18+rnd*6+c)*4,4)}, v14 offset:{rt*16*XP + c*64}")
        return tok
    for n in range(6):
        for s_ in norm_ins(n): A(s_)
        xwrite(A, n)
        if late_dma:
            st = late_dma.pop(0); dma(A, st, st)
    A.drain_lg()
    A("s_barrier")
    xread(A, 0)
    A.wait_vm(dma_tok.get(1))
    A.drain_lg()
    A("s_barrier")
    if st_ is not None: stamp(A, 82); A.nlg += 2; A.drain_lg()
    A(f"v_mov_b32 v{V_C1}, {f32(C1)}")
    A("s_cmp_ge_u32 s50, 4")
    A(f"s_cbranch_scc1 {L('j1')}")
    text += A.text()
    base = A

    def program(j):
        A = Stream()
        A.nvm, A.vm_done, A.nlg, A.lg_done = base.nvm, base.vm_done, base.nlg, base.lg_done
        tiles = [list(range(0, 5)), list(range(0, 4)), list(range(0, 4))] if j == 0 else [list(range(5, 9)), list(range(4, 9)), list(range(4, 7))]
        PA = PP
        PB = PP + 4 * len(tiles[0])
        pend = [PA, PB]
        acc = lambda a_, rt: ACC + (a_ * 2 + rt) * 4
        pitch = [288, 288, 224]
        FR = []
        for job in range(3):
            for s9 in range(9):
                for c in range(2):
                    for ai, t in enumerate(tiles[job]):
                        FR.append((job, job * 9 + s9, c, ai, t))
        first_slot = {}
        for n, fr in enumerate(FR):
            first_slot.setdefault(fr[1], 2 * n)
        first_slot[27] = 2 * len(FR)
        rtok = {}
        state = dict(cur_stage=0, mstage=0)
        ev = {"nonce": tok_nonce}
        def issue_read(n):
            job, st, c, ai, t = FR[n]
            if st != state["cur_stage"]:
                if st == 18:
                    A(f"v_add_u32 v{V_TR}, {slot_of[st]*SLOT}, v{V_D0+2}")
                else:
                    d = (slot_of[st] - slot_of[st - 1]) * SLOT
                    A(f"v_add_u32 v{V_TR}, {d}, v{V_TR}" if d > 0 else f"v_subrev_u32 v{V_TR}, {-d}, v{V_TR}")
                state["cur_stage"] = st
            b = BF[n % 4]
            p = pitch[job]
            A.lg(f"ds_read_b64_tr_b16 {v(b,2)}, v{V_TR} offset:{c*32*p + t*32}")
            rtok[n] = A.lg(f"ds_read_b64_tr_b16 {v(b+2,2)}, v{V_TR} offset:{(c*32+16)*p + t*32}")

        Q = []
        VQ = []
        class Rec:
            def __init__(s_, dl): s_.dl = dl
            def __call__(s_, t):
                if opt.get("no_valu") and t.startswith("v_") and s_.dl in (2, 3, 5, PUB_STAGE): return
                if t == "s_nop 0":
                    Q.append((lambda: None, s_.dl, 1)); return
                cost = 2 if t.startswith(("v_exp", "v_rcp", "v_rsq")) else (1 if t.startswith("v_") else 0.5)
                Q.append((lambda: A(t), s_.dl, cost))
            def grp(s_, fn, cost=1): Q.append((fn, s_.dl, cost))
            def vm(s_, nm, t): Q.append((lambda: ev.__setitem__(nm, A.vm(t)), s_.dl, 1))
            def lg(s_, nm, t): Q.append((lambda: ev.__setitem__(nm, A.lg(t)), s_.dl, 0.5))
            def wait_vm(s_, nm): Q.append((lambda: A.wait_vm(ev.get(nm)), s_.dl, 0.5))
            def wait_lg(s_, nm): Q.append((lambda: A.wait_lg(ev.get(nm)), s_.dl, 0.5))
        def flush(dl):
            idx = [q for q, it in enumerate(Q) if it[1] <= dl]
            if idx:
                for _ in range(idx[-1] + 1): Q.pop(0)[0]()
        carry = [0.0]
        def run_fillers(slot):
            if not Q: carry[0] = 0.0; return
            rate_ = BASE
            cum = 0.0; seen = {}
            for _, dl, cost in Q:
                cum += cost; seen[dl] = cum
            for dl, c_ in seen.items():
                left = first_slot[min(dl, 27)] - slot
                if left > 0: rate_ = max(rate_, c_ / left)
            carry[0] += rate_
            while Q and carry[0] >= Q[0][2] - 1e-9:
                fn, _, cost = Q.pop(0); fn(); carry[0] -= cost

        def gelu_group(R, P, rt, first):
            X = [T + r for r in range(4)]; U = [T + 4 + r for r in range(4)]
            R(f"v_lshlrev_b32 v{X[0]}, 16, v{P}")
            R(f"v_and_b32 v{X[1]}, s62, v{P}")
            R(f"v_lshlrev_b32 v{X[2]}, 16, v{P+1}")
            R(f"v_and_b32 v{X[3]}, s62, v{P+1}")
            for r in range(4): R(f"v_mul_f32 v{U[r]}, v{X[r]}, v{X[r]}")
            for r in range(4): R(f"v_fmamk_f32 v{U[r]}, v{U[r]}, {f32(C2)}, v{V_C1}")
            for r in range(4): R(f"v_mul_f32 v{U[r]}, v{U[r]}, v{X[r]}")
            for r in range(4): R(f"v_exp_f32 v{U[r]}, v{U[r]}")
            for r in range(4): R(f"v_add_f32 v{U[r]}, 1.0, v{U[r]}")
            for r in range(4): R(f"v_rcp_f32 v{U[r]}, v{U[r]}")
            for r in range(4): R(f"v_mul_f32 v{X[r]}, v{X[r]}, v{U[r]}")
            R(f"v_cvt_pk_bf16_f32 v{P}, v{X[0]}, v{X[1]}")
            R(f"v_cvt_pk_bf16_f32 v{P+1}, v{X[2]}, v{X[3]}")
            sm, sq = V_ST + 2 * rt, V_ST + 2 * rt + 1
            R(f"v_add_f32 v{U[0]}, v{X[0]}, v{X[1]}")
            R(f"v_add_f32 v{U[1]}, v{X[2]}, v{X[3]}")
            if first:
                R(f"v_mul_f32 v{sq}, v{X[0]}, v{X[0]}")
                R(f"v_add_f32 v{sm}, v{U[0]}, v{U[1]}")
            else:
                R(f"v_fmac_f32 v{sq}, v{X[0]}, v{X[0]}")
                R(f"v_add_f32 v{sm}, v{sm}, v{U[0]}")
            R(f"v_fmac_f32 v{sq}, v{X[1]}, v{X[1]}")
            if not first:
                R(f"v_add_f32 v{sm}, v{sm}, v{U[1]}")
            R(f"v_fmac_f32 v{sq}, v{X[2]}, v{X[2]}")
            R(f"v_fmac_f32 v{sq}, v{X[3]}, v{X[3]}")

        def stats_to_lds(R):
            R(f"v_and_b32 v{T}, 15, v0")
            R("s_lshl_b32 s63, s51, 5")
            R(f"v_add_u32 v{T}, s63, v{T}")
            R(f"v_lshlrev_b32 v{T}, 6, v{T}")
            R(f"v_lshrrev_b32 v{T+1}, 4, v0")
            R(f"v_lshl_add_u32 v{T}, v{T+1}, 3, v{T}")
            R(f"v_add_u32 v{T}, {SA + j*32}, v{T}")
            R.lg("stl", f"ds_write_b64 v{T}, {v(V_ST,2)}")
            R.lg("stl", f"ds_write_b64 v{T}, {v(V_ST+2,2)} offset:1024")
        def stats_publish(R):
            R(f"v_and_b32 v{V_ST+2}, 31, v0")
            R("s_lshl_b32 s63, s51, 5")
            R(f"v_add_u32 v{V_ST+2}, s63, v{V_ST+2}")
            R(f"v_lshlrev_b32 v{V_ST+3}, 6, v{V_ST+2}")
            R(f"v_add_u32 v{V_ST+3}, {SA}, v{V_ST+3}")
            P2 = PB
            R.lg("p0", f"ds_read_b128 {v(T,4)}, v{V_ST+3}")
            R.lg("p0", f"ds_read_b128 {v(T+4,4)}, v{V_ST+3} offset:16")
            R.lg("p1", f"ds_read_b128 {v(P2,4)}, v{V_ST+3} offset:32")
            R.lg("p1", f"ds_read_b128 {v(P2+4,4)}, v{V_ST+3} offset:48")
            R(f"v_lshlrev_b32 v{V_ST+2}, 4, v{V_ST+2}")
            R("s_lshl_b32 s63, s48, 4")
            R("s_add_u32 s63, s63, s49")
            R("s_lshl_b32 s63, s63, 11")
            R.wait_lg("p1")
            for e in range(4):
                R(f"v_add_f32 v{T+e}, v{T+e}, v{T+4+e}")
                R(f"v_add_f32 v{P2+e}, v{P2+e}, v{P2+4+e}")
            for e in range(4):
                R(f"v_add_f32 v{T+e}, v{T+e}, v{P2+e}")
            R(f"v_add_f32 v{T}, v{T}, v{T+2}")
            R(f"v_add_f32 v{T+2}, v{T+1}, v{T+3}")
            R(f"v_mov_b32 v{T+1}, s71")
            R(f"v_mov_b32 v{T+3}, s71")
            R.vm("pub", f"buffer_store_dwordx4 {v(T,4)}, v{V_ST+2}, s[36:39], s63 offen sc1")
        if j == 0:
            PR = [T, T + 4, ACC + 32, ACC + 36] + [PB + 4 * k for k in range(4)]
        else:
            PR = [ACC + 24 + 4 * k for k in range(4)] + [PB + 4 * k for k in range(4)]
        def part_strs():
            out = []
            for rt in range(2):
                for e in range(4):
                    out.append(f"buffer_load_dwordx4 {v(PR[rt*4+e],4)}, v{V_ST+2}, s[36:39], {'s64' if e < 2 else 's65'} offen offset:{(e&1)*2048 + rt*256} sc1")
            return out
        def part_issue(R):
            R(f"v_lshrrev_b32 v{V_ST+2}, 4, v0")
            R(f"v_lshlrev_b32 v{V_ST+2}, 13, v{V_ST+2}")
            R(f"v_and_b32 v{V_ST+3}, 15, v0")
            R(f"v_lshl_add_u32 v{V_ST+2}, v{V_ST+3}, 4, v{V_ST+2}")
            R("s_lshl_b32 s64, s48, 15")
            R("s_lshl_b32 s65, s51, 9")
            R("s_add_u32 s64, s64, s65")
            R("s_add_u32 s65, s64, 4096")
            for s_ in part_strs(): R.vm("part", s_)
        def tag_strs():
            o = [f"v_xor_b32 v{V_ST}, s71, v{PR[0]+1}", f"v_xor_b32 v{V_ST+1}, s71, v{PR[0]+3}"]
            for k in range(1, 8):
                o += [f"v_xor_b32 v{V_ST+3}, s71, v{PR[k]+1}", f"v_or_b32 v{V_ST}, v{V_ST}, v{V_ST+3}",
                      f"v_xor_b32 v{V_ST+3}, s71, v{PR[k]+3}", f"v_or_b32 v{V_ST+1}, v{V_ST+1}, v{V_ST+3}"]
            o += [f"v_or_b32 v{V_ST}, v{V_ST}, v{V_ST+1}"]
            return o
        def stats_final(R):
            R.wait_vm("part")
            for s_ in tag_strs(): R(s_)
            def chk():
                A(f"v_cmp_ne_u32 vcc, 0, v{V_ST}")
                A("s_nop 4")
                A(f"s_cbranch_vccz {L(f'pok{j}')}")
                A.label(L(f"pspin{j}"))
                A("s_sleep 8")
                for s_ in part_strs(): A(s_)
                A("s_waitcnt vmcnt(0)")
                for s_ in tag_strs(): A(s_)
                A(f"v_cmp_ne_u32 vcc, 0, v{V_ST}")
                A("s_nop 4")
                A(f"s_cbranch_vccnz {L(f'pspin{j}')}")
                A.label(L(f"pok{j}"))
            R.grp(chk, 2)
            for rt in range(2):
                for c_ in range(2):
                    q0, q1, q2, q3 = [PR[rt * 4 + e] + 2 * c_ for e in range(4)]
                    R(f"v_add_f32 v{q0}, v{q0}, v{q1}")
                    R(f"v_add_f32 v{q2}, v{q2}, v{q3}")
            for rt in range(2):
                for c_ in range(2):
                    q0, q1, q2, q3 = [PR[rt * 4 + e] + 2 * c_ for e in range(4)]
                    R(f"v_add_f32 v{V_ST + 2 * rt + c_}, v{q0}, v{q2}")
            for sw in ("v_permlane32_swap_b32", "v_permlane16_swap_b32"):
                for r in range(4): R(f"v_mov_b32 v{T+r}, v{V_ST+r}")
                for r in range(4): R(f"{sw} v{V_ST+r}, v{T+r}")
                for r in range(4): R(f"v_add_f32 v{V_ST+r}, v{V_ST+r}, v{T+r}")
            seq = lambda m, q: [f"v_mul_f32 v{m}, {f32(1.0/FH)}, v{m}", f"v_mul_f32 v{q}, {f32(1.0/FH)}, v{q}",
                                f"v_fma_f32 v{q}, -v{m}, v{m}, v{q}", f"v_max_f32 v{q}, 0, v{q}", f"v_add_f32 v{q}, {f32(1e-5)}, v{q}",
                                f"v_rsq_f32 v{q}, v{q}", f"v_mul_f32 v{m}, -v{m}, v{q}"]
            for a_, b_ in zip(seq(V_ST, V_ST + 1), seq(V_ST + 2, V_ST + 3)):
                R(a_); R(b_)
            for a_, tt in enumerate(tiles[0]):
                for rt in range(2):
                    norm_group(R, PA + (a_ * 2 + rt) * 2, rt, tt)
        def z2n_addr(R):
            R(f"v_bfe_u32 v{V_D0+1}, v0, 2, 1")
            R(f"v_lshlrev_b32 v{V_D0}, 9, v{V_D0+1}")
            R(f"v_bfe_u32 v{V_D0+1}, v0, 3, 1")
            R(f"v_lshl_add_u32 v{V_D0}, v{V_D0+1}, 7, v{V_D0}")
            R(f"v_and_b32 v{V_D0+1}, 3, v0")
            R(f"v_lshl_add_u32 v{V_D0}, v{V_D0+1}, 5, v{V_D0}")
            R(f"v_lshrrev_b32 v{V_D0+1}, 4, v0")
            R(f"v_lshl_add_u32 v{V_D0}, v{V_D0+1}, 3, v{V_D0}")
            R("s_lshl_b32 s66, s49, 6")
            R("s_lshl_b32 s63, s48, 2")
            R("s_add_u32 s66, s66, s63")
            R("s_add_u32 s66, s66, s51")
            R("s_mul_i32 s66, s66, 9216")
        def qkv_addr(R):
            R(f"v_and_b32 v{V_SE}, 15, v0")
            R("s_lshl_b32 s63, s48, 7")
            R("s_lshl_b32 s70, s51, 5")
            R("s_add_u32 s63, s63, s70")
            R(f"v_add_u32 v{V_SE}, s63, v{V_SE}")
            R(f"v_mul_u32_u24 v{V_SE}, 3456, v{V_SE}")
            R(f"v_lshrrev_b32 v{V_SO}, 4, v0")
            R(f"v_lshlrev_b32 v{V_SO}, 3, v{V_SO}")
            R(f"v_add3_u32 v{V_SE}, v{V_SE}, v{V_SO}, s67")
            R("s_mov_b32 s70, 55296")
        def norm_group(R, P, rt, t):
            m, q = V_ST + 2 * rt, V_ST + 2 * rt + 1
            X = [T + (0 if rt == 0 else 4) + r for r in range(4)]
            R(f"v_lshlrev_b32 v{X[0]}, 16, v{P}")
            R(f"v_and_b32 v{X[1]}, s62, v{P}")
            R(f"v_lshlrev_b32 v{X[2]}, 16, v{P+1}")
            R(f"v_and_b32 v{X[3]}, s62, v{P+1}")
            for r in range(4): R(f"v_fma_f32 v{X[r]}, v{X[r]}, v{q}, v{m}")
            R(f"v_cvt_pk_bf16_f32 v{P}, v{X[0]}, v{X[1]}")
            R(f"v_cvt_pk_bf16_f32 v{P+1}, v{X[2]}, v{X[3]}")
            R(f"s_add_u32 s63, s66, {t*1024}")
            R.vm("zst", f"buffer_store_dwordx2 {v(P,2)}, v{V_D0}, s[24:27], s63 offen offset:{rt*256}")
        def z1_addr(R):
            R("s_and_b32 s63, s49, 1")
            R("s_lshl_b32 s65, s48, 3")
            R("s_lshl_b32 s66, s51, 1")
            R("s_add_u32 s65, s65, s66")
            R("s_mul_i32 s65, s65, 72")
            R("s_mul_i32 s66, s49, 9")
            R("s_lshr_b32 s66, s66, 1")
            R("s_add_u32 s65, s65, s66")
            R("s_lshl_b32 s65, s65, 10")
            def g():
                A("s_cmp_eq_u32 s63, 0")
                A("s_cselect_b32 s66, 8, 1024")
            R.grp(g)
            R("s_add_u32 s66, s66, s65")
            R("s_lshl_b32 s63, s63, 3")
            R("s_add_u32 s65, s65, s63")
            R(f"v_lshlrev_b32 v{V_SE}, 4, v0")
            R(f"v_add_u32 v{V_SO}, s66, v{V_SE}")
            R(f"v_add_u32 v{V_SE}, s65, v{V_SE}")
        def qkv_dma_addr(R):
            Z = PB + 8
            R("s_mul_i32 s67, s49, 27")
            R("s_lshr_b32 s67, s67, 2")
            R("s_lshl_b32 s67, s67, 5")
            R("s_lshl_b32 s63, s50, 3")
            for p in range(2):
                R(f"v_add_u32 v{Z+2}, {64*p}, v0")
                R(f"v_mul_u32_u24 v{Z+3}, 4682, v{Z+2}")
                R(f"v_lshrrev_b32 v{Z+3}, 16, v{Z+3}")
                R(f"v_mul_u32_u24 v{Z+p}, 14, v{Z+3}")
                R(f"v_sub_u32 v{Z+2}, v{Z+2}, v{Z+p}")
                R(f"v_add_u32 v{Z+3}, s63, v{Z+3}")
                R(f"v_mul_u32_u24 v{Z+3}, 3456, v{Z+3}")
                R(f"v_lshlrev_b32 v{Z+2}, 4, v{Z+2}")
                R(f"v_add3_u32 v{Z+p}, v{Z+3}, v{Z+2}, s67")
                if p: R(f"v_subrev_u32 v{Z+p}, 1024, v{Z+p}")
            R(f"v_lshrrev_b32 v{Z+2}, 2, v0")
            R(f"v_mul_u32_u24 v{Z+2}, 224, v{Z+2}")
            R(f"v_and_b32 v{Z+3}, 3, v0")
            R(f"v_lshl_add_u32 v{Z+2}, v{Z+3}, 3, v{Z+2}")
        def qkv_dma_switch():
            Z = PB + 8
            for p in range(3): A(f"v_mov_b32 v{V_D0+p}, v{Z+p}")
        def nonce_load(R):
            R("s_lshl_b32 s63, s50, 6")
            R(f"v_add_u32 v{V_SO}, s63, v0")
            R(f"v_lshlrev_b32 v{V_SO}, 12, v{V_SO}")
            R.vm("nonce", f"buffer_load_dword v{V_SE}, v{V_SO}, s[40:43], s3 offen sc1")
        def nonce_write(R):
            R.wait_vm("nonce")
            def g():
                A(f"v_readfirstlane_b32 s63, v{V_SE}")
                A("s_nop 3")
                A("s_or_b32 s63, s63, s50")
                A(f"s_cbranch_scc1 {L(f'nok{j}')}")
                A.label(L(f"nspin{j}"))
                A("s_sleep 8")
                A(f"buffer_load_dword v{V_SE}, v{V_SO}, s[40:43], s3 offen sc1")
                A("s_waitcnt vmcnt(0)")
                A(f"v_readfirstlane_b32 s63, v{V_SE}")
                A("s_nop 3")
                A("s_cmp_eq_u32 s63, 0")
                A(f"s_cbranch_scc1 {L(f'nspin{j}')}")
                A.label(L(f"nok{j}"))
            R.grp(g, 3)
            R("s_lshl_b32 s63, s50, 8")
            R(f"s_add_u32 s63, s63, {NA}")
            R(f"v_lshlrev_b32 v{V_SO}, 2, v0")
            R(f"v_add_u32 v{V_SO}, s63, v{V_SO}")
            R.lg("nw", f"ds_write_b32 v{V_SO}, v{V_SE}")
        def nonce_read(R):
            R(f"v_mov_b32 v{V_SO}, {NA}")
            R.lg("nr", f"ds_read_b32 v{V_SE}, v{V_SO}")
            R("s_nop 0"); R("s_nop 0")
            R.wait_lg("nr")
            R(f"v_readfirstlane_b32 s71, v{V_SE}")
        def wsp_pf_setup(R):
            for s_ in ("s_mov_b32 s76, s10", "s_mov_b32 s77, s11", f"s_mov_b32 s78, {S*S*2}", "s_mov_b32 s79, 0x00020000",
                       "s_lshl_b32 s68, s2, 3", "s_add_u32 s68, s68, s50", "s_lshl_b32 s68, s68, 12"):
                R(s_)
            R(f"v_lshlrev_b32 v{PB+15}, 4, v0")
        def wsp_pf_item(p):
            def g():
                ev["pf"] = A.vm(f"buffer_load_dwordx4 {v(PB+4,4)}, v{PB+15}, s[76:79], s68 offen offset:{p*1024}")
            return g
        def repack_issue(R, slot):
            for s_ in ("s_lshl_b32 s63, s2, 2", "s_add_u32 s63, s63, s51", "s_lshr_b32 s68, s63, 3", "s_and_b32 s69, s63, 7",
                       f"s_mov_b32 s78, {D*D*2}"):
                R(s_)
            def g():
                A("s_cmp_lt_u32 s68, 18")
                A("s_cselect_b32 s76, s72, s74")
                A("s_cselect_b32 s77, s73, s75")
                A(f"s_cselect_b32 s78, s78, {FH*D*2}")
                A("s_cselect_b32 s63, 0, 18")
            R.grp(g, 2)
            for s_ in ("s_sub_u32 s63, s68, s63", f"s_mul_i32 s63, s63, {32*1152}", "s_mul_i32 s70, s69, 144", "s_add_u32 s63, s63, s70",
                       f"v_mul_u32_u24 v{T}, 7282, v0", f"v_lshrrev_b32 v{T}, 16, v{T}", f"v_mul_u32_u24 v{T+1}, 9, v{T}",
                       f"v_sub_u32 v{T+1}, v0, v{T+1}", f"v_mul_u32_u24 v{T}, 1152, v{T}", f"v_lshl_add_u32 v{T}, v{T+1}, 4, v{T}",
                       "s_mul_i32 s70, s51, 4608", f"s_add_u32 s70, s70, {slot*SLOT}"):
                R(s_)
            for p in range(5):
                def g(p=p):
                    A(f"s_add_u32 m0, s70, {p*1008}")
                    if p == 4:
                        A("s_mov_b32 exec_hi, 0xf")
                    ev["rp"] = A.vm(f"buffer_load_dwordx4 v{T}, s[76:79], s63 offen lds")
                    if p == 4: A("s_mov_b64 exec, -1")
                    A(f"s_add_u32 s63, s63, {7*1152}")
                R.grp(g, 2)
            a0, a1, a2, a3 = V_D0, V_D0 + 1, V_D0 + 2, V_SO
            for s_ in (f"v_lshrrev_b32 v{a0}, 2, v0", f"v_mul_u32_u24 v{a0}, 144, v{a0}", f"v_and_b32 v{a1}, 3, v0",
                       f"v_lshl_add_u32 v{a0}, v{a1}, 3, v{a0}", f"v_add_u32 v{a0}, s70, v{a0}",
                       f"v_lshlrev_b32 v{a1}, 4, v0",
                       f"v_lshrrev_b32 v{a2}, 4, v0", f"v_lshlrev_b32 v{a2}, 7, v{a2}", f"v_and_b32 v{a3}, 7, v0",
                       f"v_lshl_add_u32 v{a2}, v{a3}, 4, v{a2}", f"v_and_b32 v{a3}, 8, v0", f"v_lshl_add_u32 v{a2}, v{a3}, 24, v{a2}",
                       f"v_add_u32 v{a2}, 4096, v{a2}"):
                R(s_)
        def repack_finish(R):
            a0, a1, a2 = V_D0, V_D0 + 1, V_D0 + 2
            RR = [T, T + 4, PB + 16, T, T + 4]
            def g():
                A(f"s_add_u32 s76, s46, {WS_WP}")
                A("s_addc_u32 s77, s47, 0")
                A(f"s_mov_b32 s78, {SZ_WP}")
            R.wait_vm("rp")
            R.grp(g, 1.5)
            R("s_mul_i32 s63, s69, 90")
            R("s_add_u32 s63, s63, s68")
            R("s_mul_i32 s63, s63, 4608")
            def g2():
                A("s_cmp_lt_u32 s68, 90")
                A(f"s_cselect_b32 s63, s63, {SZ_WP}")
            R.grp(g2, 1)
            for grp in ((0, 1, 2), (3, 4)):
                for dt in grp:
                    R.lg("rr", f"ds_read_b64_tr_b16 {v(RR[dt],2)}, v{a0} offset:{dt*32}")
                    R.lg("rr", f"ds_read_b64_tr_b16 {v(RR[dt]+2,2)}, v{a0} offset:{2304+dt*32}")
                for _ in range(6): R("s_nop 0")
                R.wait_lg("rr")
                for dt in grp:
                    if dt < 4: R.vm("rs", f"buffer_store_dwordx4 {v(RR[dt],4)}, v{a1}, s[76:79], s63 offen offset:{dt*1024}")
                    else: R.vm("rs", f"buffer_store_dwordx4 {v(RR[dt],4)}, v{a2}, s[76:79], s63 offen")

        cvt_pending = {}
        def cvt_slot(job, a_):
            out = []
            for rt in range(2):
                P = pend[job] + (a_ * 2 + rt) * 2
                c = acc(a_, rt)
                out.append(f"v_cvt_pk_bf16_f32 v{P}, v{c}, v{c+1}")
                out.append(f"v_cvt_pk_bf16_f32 v{P+1}, v{c+2}, v{c+3}")
            return out
        def q_round(R, rnd, writes_now):
            for n in range(rnd * 6, rnd * 6 + 6):
                for s_ in norm_ins(n): R(s_)
                if writes_now:
                    R.grp(lambda n=n: ev.__setitem__(f"xw{rnd}", xwrite(A, n)), 1)
        def xread_items(R, rnd):
            for c in range(6):
                for rt in range(2):
                    R.lg(f"xr{rnd}", f"ds_read_b128 {v(AX+(rt*18+rnd*6+c)*4,4)}, v14 offset:{rt*16*XP + c*64}")

        BASE = opt.get("base", 2.0)
        q_round(Rec(2), 1, True)
        for _ in range(8): Rec(2)("s_nop 0")
        DIST = 3
        free_slots = []; next_stage = NI
        for n in range(DIST):
            issue_read(n)
        for n, (job, st, c, ai, t) in enumerate(FR):
            k = (st % 9) * 2 + c
            if st != state["mstage"]:
                flush(st)
                while VQ: VQ.pop(0)()
                for nm, at in (("xw1", 2), ("xr1", 3), ("xw2", 5), ("xr2", 6), ("nw", 8), ("stl", PUB_STAGE)):
                    if st == at: A.wait_lg(ev.get(nm))
                if st + 1 in dma_tok: A.wait_vm(dma_tok[st + 1])
                A("s_barrier")
                state["mstage"] = st
                if st_ is not None and st in (9, 18):
                    stamp(A, 82 + (st // 9) * 2); A.nlg += 2; A.drain_lg()
                if opt.get("trace") and st in TRS:
                    A(("s_memrealtime" if opt.get("rt") else "s_memtime") + " s[100:101]"); A.nlg += 2; A.drain_lg()
                    A(f"s_mov_b32 s{TRR[TRS.index(st)]}, s100")
                free_slots.append(slot_of[st - 1])
                if st == 6: free_slots.append(6)
                if st == 7: free_slots.append(7)
                while free_slots and next_stage < 27:
                    if next_stage == 18: VQ.append(qkv_dma_switch); state["qsw"] = st
                    VQ += dma_items(A, next_stage, free_slots.pop(0)); next_stage += 1
                if st == 2:
                    xread_items(Rec(3), 1)
                    for n_ in (12, 13):
                        for s_ in norm_ins(n_): Rec(3)(s_)
                if st == 3:
                    for n_ in range(12, 18):
                        if n_ >= 14:
                            for s_ in norm_ins(n_): Rec(5)(s_)
                        Rec(5).grp(lambda n_=n_: ev.__setitem__("xw2", xwrite(A, n_)), 1)
                    for _ in range(8): Rec(5)("s_nop 0")
                if st == 5: xread_items(Rec(6), 2); nonce_load(Rec(6))
                if st == 6:
                    qkv_dma_addr(Rec(8)); wsp_pf_setup(Rec(8)); nonce_write(Rec(8))
                if st == 8: nonce_read(Rec(9)); z1_addr(Rec(10))
                PF0 = opt.get("pf", 9)
                if PF0 <= st < PF0 + 4: VQ.append(wsp_pf_item(st - PF0))
                if st == PUB_STAGE: A.wait_vm(ev.get("pf"))
                if st == PUB_STAGE and j == 0: stats_publish(Rec(PUB_STAGE + 1))
                if st == 20:
                    if j == 1: repack_issue(Rec(22), free_slots.pop(0))
                if st == POLL_STAGE: part_issue(Rec(POLL_STAGE + 1))
                if st == 23 and j == 1: repack_finish(Rec(25))
                if st == FIN_STAGE - 1: z2n_addr(Rec(FIN_STAGE + 1)); qkv_addr(Rec(FIN_STAGE + 1))
                if st == FIN_STAGE: stats_final(Rec(28))
                if st % 9 == 0:
                    pj = job - 1
                    for a_ in range(len(tiles[pj])):
                        cvt_pending[a_] = cvt_slot(pj, a_)
                    extra = [a_ for a_ in cvt_pending if a_ >= len(tiles[job])]
                    R = Rec(st + 1)
                    for a_ in extra:
                        for s_ in cvt_pending.pop(a_): R(s_)
                    state["queue"] = pj
                state["vq_next"] = 2 * n + (1 if j == 0 else 3)
            if n + DIST < len(FR):
                issue_read(n + DIST)
            if ai in cvt_pending:
                for s_ in cvt_pending.pop(ai): A(s_)
            A.wait_lg(rtok[n])
            b = BF[n % 4]
            for rt in range(2):
                cc = "0" if k == 0 else v(acc(ai, rt), 4)
                if not opt.get("no_mfma"):
                    A(f"v_mfma_f32_16x16x32_bf16 {v(acc(ai,rt),4)}, {v(b,4)}, {v(AX+(rt*18+k)*4,4)}, {cc}")
                slot = 2 * n + rt
                if VQ and slot >= state.get("vq_next", 0):
                    VQ.pop(0)()
                    left = first_slot[st + 1] - slot - 1
                    state["vq_next"] = slot + max(1, min(4, left // (len(VQ) + 1)))
                else:
                    run_fillers(slot)
            if state.get("queue") is not None and not cvt_pending:
                pj = state.pop("queue")
                R = Rec(PUB_STAGE if pj == 0 else 20)
                for a_, tt in enumerate(tiles[pj]):
                    for rt in range(2):
                        P = pend[pj] + (a_ * 2 + rt) * 2
                        if pj == 0:
                            gelu_group(R, P, rt, a_ == 0)
                        else:
                            R(f"s_mov_b32 s63, {rt*72*1024 + (tt//2)*1024}")
                            R.vm("z1s", f"buffer_store_dwordx2 {v(P,2)}, v{V_SE if tt % 2 == 0 else V_SO}, s[28:31], s63 offen")
                if pj == 0: stats_to_lds(R)
        if st_ is not None: stamp(A, 88); A.nlg += 2
        for a_, tt in enumerate(tiles[2]):
            for rt in range(2):
                c = acc(a_, rt)
                A(f"v_cvt_pk_bf16_f32 v{c}, v{c}, v{c+1}")
                A(f"v_cvt_pk_bf16_f32 v{c+1}, v{c+2}, v{c+3}")
                A.vm(f"buffer_store_dwordx2 {v(c,2)}, v{V_SE}, s[32:35], {'s70' if rt else '0'} offen offset:{tt*32}")
        flush(99)
        if opt.get("trace"):
            A(("s_memrealtime" if opt.get("rt") else "s_memtime") + " s[100:101]")
            A("s_waitcnt vmcnt(0) lgkmcnt(0)")
            srd(A, 92, 46, 1 << 20, WS_DIAG + (1 << 20))
            A("s_lshl_b32 s63, s2, 3")
            A("s_add_u32 s63, s63, s50")
            A("s_lshl_b32 s63, s63, 6")
            A("v_mov_b32 v12, s63")
            for q_, r_ in enumerate(TRR + [100]):
                A(f"v_mov_b32 v13, s{r_}")
                A(f"buffer_store_dword v13, v12, s[92:95], 0 offen offset:{q_*4}")
            A("s_waitcnt vmcnt(0)")
        if st_ is not None and j == 0:
            A("s_cmp_eq_u32 s50, 0")
            A(f"s_cbranch_scc0 {L('end')}")
            stamp_store(A, 46, st_, [80, 96, 98, 82, 84, 86, 88, 90], 92, vtmp=12)
        A("s_endpgm")
        return A.text()

    saved = dict(dma_tok); saved_slots = dict(slot_of)
    text += program(0)
    text += L("j1") + ":\n"
    dma_tok.clear(); dma_tok.update(saved); slot_of.clear(); slot_of.update(saved_slots)
    text += program(1)
    text += L("end") + ":\n    s_endpgm\n"
    return text, kernel_desc(name, 256, 102), f"; @launch kernel={name} grid=(256,1,1) block=(512,1,1) lds=163840"
```

```python
from asmlib import *
from layout import *
from k1 import f32, C1, C2

SLOT = 34816
NST = 32
KV = 4 * SLOT
KVSZ = 40 * 288

def gen_k3(name="k3_kernel", opt=None):
    opt = opt or {}
    st_ = opt.get("stamp", None)
    A = Asm()
    kernel_header(A, name)
    L = lambda s_: f"{name}_{s_}"
    A(f"s_cmp_ge_u32 s2, 256")
    A(f"s_cbranch_scc1 {L('end')}")
    if st_ is not None: stamp(A, 50)
    A("s_load_dwordx4 s[4:7], s[0:1], 40")
    A("s_load_dwordx2 s[8:9], s[0:1], 80")
    A("s_and_b32 s35, s2, 7")
    A("s_lshr_b32 s36, s2, 3")
    A("s_lshr_b32 s32, s35, 2")
    A("s_lshl_b32 s32, s32, 3")
    A("s_lshr_b32 s37, s36, 2")
    A("s_add_u32 s32, s32, s37")
    A("s_and_b32 s33, s35, 3")
    A("s_lshl_b32 s33, s33, 2")
    A("s_and_b32 s37, s36, 3")
    A("s_add_u32 s33, s33, s37")
    A("v_lshrrev_b32 v1, 6, v0")
    A("v_and_b32 v0, 63, v0")
    A("v_readfirstlane_b32 s34, v1")
    A("s_nop 3")
    A("s_cmp_ge_u32 s34, 4")
    A(f"s_cbranch_scc1 {L('loader')}")

    ACC = 112
    WF = [8, 24]
    ZF = [40, 76]
    acc = lambda a_, f: ACC + (a_ * 9 + f) * 4
    if opt.get("prio", 0) == 1: A("s_setprio 2")
    A("s_and_b32 s38, s34, 1")
    A("s_lshr_b32 s39, s34, 1")
    A("v_and_b32 v1, 15, v0")
    A("s_lshl_b32 s40, s32, 7")
    A("s_lshl_b32 s41, s38, 6")
    A("s_add_u32 s40, s40, s41")
    A("v_add_u32 v7, s40, v1")
    A("v_lshlrev_b32 v7, 1, v7")
    A("v_lshrrev_b32 v3, 4, v0")
    A("s_lshl_b32 s41, s39, 2")
    A("v_add_u32 v3, s41, v3")
    A("v_and_b32 v4, 7, v0")
    A("v_xor_b32 v3, v3, v4")
    A("v_lshlrev_b32 v3, 4, v3")
    A("v_lshlrev_b32 v4, 7, v1")
    A("v_add_u32 v3, v3, v4")
    A("s_lshl_b32 s41, s38, 13")
    A("v_add_u32 v1, s41, v3")
    A(f"v_add_u32 v2, {2*SLOT}, v1")
    A("s_mul_i32 s41, s39, 9216")
    A("s_add_u32 s41, s41, 16384")
    A("v_lshlrev_b32 v3, 3, v0")
    A("v_add_u32 v3, s41, v3")
    A(f"v_add_u32 v4, {2*SLOT}, v3")
    A("s_waitcnt lgkmcnt(0)")
    srd(A, 24, 8, SZ_YC, WS_YC)
    srd(A, 28, 6, S * 2)
    A("s_lshl_b32 s41, s39, 6")
    A("buffer_load_ushort v5, v7, s[28:31], s41 offen")
    A("buffer_load_ushort v6, v7, s[28:31], s41 offen offset:32")

    def reads(st, slot):
        out = []
        wa = "v1" if slot < 2 else "v2"
        za = "v3" if slot < 2 else "v4"
        so = (slot & 1) * SLOT
        def z(f):
            out.append(f"ds_read_b64_tr_b16 {v(ZF[st]+4*f,2)}, {za} offset:{so + f*1024}")
            out.append(f"ds_read_b64_tr_b16 {v(ZF[st]+4*f+2,2)}, {za} offset:{so + f*1024 + 512}")
        z(0)
        for a_ in range(4):
            out.append(f"ds_read_b128 {v(WF[st]+4*a_,4)}, {wa} offset:{so + a_*2048}")
        for f in range(1, 9):
            z(f)
        return out
    def body(u, first=False, cmp=None):
        st = u & 1
        rd = reads(st ^ 1, (u + 1) & 3)
        n = 0
        for f in range(9):
            for a_ in range(4):
                cc = "0" if first else v(acc(a_, f), 4)
                A(f"v_mfma_f32_16x16x32_bf16 {v(acc(a_,f),4)}, {v(ZF[st]+4*f,4)}, {v(WF[st]+4*a_,4)}, {cc}")
                if n % 3 != 2 and rd:
                    A(rd.pop(0))
                n += 1
        assert not rd
        if cmp:
            A("s_add_u32 s43, s43, 1")
            A(f"s_cmp_lt_u32 s43, {cmp}")
        A("s_waitcnt lgkmcnt(0)")
        A("s_barrier")

    A("s_barrier")
    for r in reads(0, 0): A(r)
    A("s_waitcnt lgkmcnt(0)")
    A("s_barrier")
    A("s_mov_b32 s43, 0")
    if st_ is not None:
        stamp(A, 52); A("s_memtime s[64:65]")
    body(0, first=True)
    A(f"s_branch {L('c1')}")
    A.raw(".p2align 6")
    A.label(L("cloop"))
    body(0)
    A.label(L("c1"))
    body(1); body(2); body(3, cmp=NST // 4)
    A(f"s_cbranch_scc1 {L('cloop')}")
    if st_ is not None:
        stamp(A, 54); A("s_memtime s[66:67]")

    XB = 40960
    A("s_mul_i32 s41, s34, 18432")
    A(f"s_add_u32 s41, s41, {XB}")
    A("v_lshlrev_b32 v7, 4, v0")
    A("v_add_u32 v8, s41, v7")
    A("s_xor_b32 s42, s34, 2")
    A("s_mul_i32 s42, s42, 18432")
    A(f"s_add_u32 s42, s42, {XB}")
    A("v_add_u32 v9, s42, v7")
    A("s_cmp_eq_u32 s39, 0")
    A(f"s_cbranch_scc0 {L('j1')}")
    for jj in range(2):
        if jj == 1:
            A.label(L("j1"))
        A("s_nop 2")
        keep = [0, 1] if jj == 0 else [2, 3]
        send = [2, 3] if jj == 0 else [0, 1]
        n = 0
        for a_ in send:
            for f in range(9):
                A(f"ds_write_b128 v8, {v(acc(a_,f),4)} offset:{n*1024}")
                n += 1
        A("s_and_b32 s41, s33, 1")
        A("s_mul_i32 s42, s38, 20480")
        A("s_lshl_b32 s44, s41, 3")
        A("s_add_u32 s44, s44, s42")
        A("s_cmp_eq_u32 s41, 0")
        A("s_cselect_b32 s45, 8, 1024")
        A("s_add_u32 s45, s45, s42")
        A("v_add_u32 v1, s44, v7")
        A("v_add_u32 v2, s45, v7")
        Z1 = 76
        n = 0
        for a_ in keep:
            for f in range(9):
                ad = "v1" if f % 2 == 0 else "v2"
                A(f"ds_read_b64 {v(Z1+2*n,2)}, {ad} offset:{a_*5120 + (f//2)*1024}")
                n += 1
        A("s_lshl_b32 s46, s32, 3")
        A("s_lshl_b32 s47, s38, 2")
        A("s_add_u32 s46, s46, s47")
        A("s_mul_i32 s46, s46, 90")
        A("s_mul_i32 s47, s33, 9")
        A("s_lshr_b32 s47, s47, 1")
        A("s_add_u32 s46, s46, s47")
        A("s_add_u32 s46, s46, 18")
        A("s_lshl_b32 s46, s46, 10")
        A("s_sub_u32 s46, s46, s42")
        A("v_add_u32 v3, s46, v1")
        A("v_add_u32 v4, s46, v2")
        A("s_mov_b32 s48, 0xffff0000")
        A("s_waitcnt vmcnt(0)")
        A("v_lshlrev_b32 v5, 16, v5")
        A("v_lshlrev_b32 v6, 16, v6")
        A("s_waitcnt lgkmcnt(0)")
        A("s_barrier")
        P = acc(send[0], 0)
        for n in range(18):
            A(f"ds_read_b128 {v(P+4*n,4)}, v9 offset:{n*1024}")
        U = 8
        n = 0
        for ai, a_ in enumerate(keep):
            for f in range(9):
                c = acc(a_, f)
                for r in range(4):
                    A(f"v_add_f32 v{c+r}, v{5+ai}, v{c+r}")
        n = 0
        for ai, a_ in enumerate(keep):
            for f in range(9):
                c = acc(a_, f)
                t = U + (n % 4) * 6
                A(f"v_lshlrev_b32 v{t}, 16, v{Z1+2*n}")
                A(f"v_and_b32 v{t+1}, s48, v{Z1+2*n}")
                A(f"v_lshlrev_b32 v{t+2}, 16, v{Z1+2*n+1}")
                A(f"v_and_b32 v{t+3}, s48, v{Z1+2*n+1}")
                A(f"s_waitcnt lgkmcnt({min(15, 17-n)})")
                for r in range(4):
                    A(f"v_add_f32 v{c+r}, v{c+r}, v{P+4*n+r}")
                for r in range(4):
                    A(f"v_mul_f32 v{c+r}, v{c+r}, v{t+r}")
                A(f"v_cvt_pk_bf16_f32 v{t+4}, v{c}, v{c+1}")
                A(f"v_cvt_pk_bf16_f32 v{t+5}, v{c+2}, v{c+3}")
                ad = "v3" if f % 2 == 0 else "v4"
                A(f"s_mov_b32 s47, {a_*90*1024 + (f//2)*1024}")
                A(f"buffer_store_dwordx2 {v(t+4,2)}, {ad}, s[24:27], s47 offen")
                n += 1
        if st_ is not None and jj == 0:
            A("s_cmp_eq_u32 s34, 0")
            A(f"s_cbranch_scc0 {L('end')}")
            stamp_store(A, 8, st_, [50, 52, 54, 64, 66, 56], 60)
        A("s_endpgm")

    A.label(L("loader"))
    if opt.get("prio", 0) == 2: A("s_setprio 2")
    A("s_sub_u32 s38, s34, 4")
    A("v_lshrrev_b32 v5, 3, v0")
    A("v_and_b32 v6, 7, v0")
    A("v_xor_b32 v6, v6, v5")
    A("v_lshlrev_b32 v6, 4, v6")
    A("s_lshl_b32 s40, s32, 7")
    A("s_lshl_b32 s41, s38, 5")
    A("s_add_u32 s40, s40, s41")
    A("v_add_u32 v5, s40, v5")
    A("v_lshlrev_b32 v5, 12, v5")
    A("v_add_u32 v1, v5, v6")
    for p in range(1, 4):
        A(f"v_add_u32 v{1+p}, {p*(32768-1024)}, v1")
    A("s_mul_i32 s41, s38, 5")
    A("s_cmp_eq_u32 s38, 3")
    A("s_cselect_b32 s41, 14, s41")
    A("s_lshl_b32 s41, s41, 10")
    A("v_lshlrev_b32 v6, 4, v0")
    A("v_add_u32 v5, s41, v6")
    A("s_lshl_b32 s40, s38, 12")
    A("s_add_u32 s41, s41, 16384")
    A("s_waitcnt lgkmcnt(0)")
    srd(A, 12, 4, S * S * 2)
    A(f"s_mul_i32 s37, s33, {NST * 18432}")
    A(f"s_add_u32 s16, s8, s37")
    A(f"s_addc_u32 s17, s9, 0")
    A(f"s_mov_b32 s18, {NST * 18432}")
    A("s_mov_b32 s19, 0x00020000")
    A("s_cmp_ge_u32 s38, 2")
    A(f"s_cbranch_scc1 {L('ld4')}")
    text = A.text()

    def loader(NB):
        A = Stream()
        tok = {}
        def issue(st, between=lambda: None):
            slot = st % 4
            A(f"s_add_u32 m0, s40, {slot*SLOT}")
            A(f"s_mov_b32 s42, {st*128}")
            for p in range(4):
                A.vm(f"buffer_load_dwordx4 v{1+p}, s[12:15], s42 offen offset:{p*1024} lds")
                between()
            A(f"s_add_u32 m0, s41, {slot*SLOT}")
            A(f"s_mov_b32 s43, {st*18432}")
            for p in range(4):
                tok[st] = A.vm(f"buffer_load_dwordx4 v5, s[16:19], s43 offen offset:{p*1024} lds")
                between()
            if NB == 5:
                A(f"s_add_u32 m0, s41, {slot*SLOT+4096}")
                A(f"s_mov_b32 s43, {st*18432+4096}")
                tok[st] = A.vm(f"buffer_load_dwordx4 v5, s[16:19], s43 offen lds")
        for st in range(4): issue(st)
        srd(A, 20, 8, SZ_Z, WS_Z1)
        srd(A, 24, 8, SZ_YC, WS_YC)
        srd(A, 28, 8, SZ_QKV, WS_QKV)
        Q = []
        ev = {}
        R = lambda t: Q.append(lambda: A(t))
        def Rvm(nm, t): Q.append(lambda: ev.__setitem__(nm, A.vm(t)))
        def Rlg(nm, t): Q.append(lambda: ev.__setitem__(nm, A.lg(t)))
        def Rwv(nm): Q.append(lambda: A.wait_vm(ev[nm]))
        def Rwl(nm): Q.append(lambda: A.wait_lg(ev[nm]))
        QR, KR, LG, OA, TT = 16, 28, 100, 108, 126
        QU = 140
        Z1 = 160
        A("s_lshr_b32 s50, s2, 3")
        A("s_lshl_b32 s50, s50, 6")
        A("s_bfe_u32 s51, s2, 0x10002")
        A("s_add_u32 s50, s50, s51")
        A("s_and_b32 s51, s2, 3")
        A("s_mul_i32 s52, s51, 288")
        A("v_mul_u32_u24 v7, 3641, v0")
        A("v_lshrrev_b32 v7, 16, v7")
        A("v_mul_u32_u24 v8, 18, v7")
        A("v_sub_u32 v8, v0, v8")
        A("s_and_b32 s53, s38, 1")
        A("s_mul_i32 s53, s53, 19")
        A("v_add_u32 v7, s53, v7")
        A("v_lshlrev_b32 v7, 1, v7")
        A("s_sub_u32 s54, s50, 14")
        A("v_add_u32 v7, s54, v7")
        A("v_mul_i32_i24 v7, 3456, v7")
        A("v_lshl_add_u32 v7, v8, 4, v7")
        A(f"s_add_u32 s54, s52, {1152 if NB == 5 else 2304}")
        A("v_add_u32 v7, s54, v7")
        A("s_mul_i32 s53, s53, 288")
        A(f"s_add_u32 s53, s53, {KV + (0 if NB == 5 else KVSZ)}")
        A("s_mov_b32 exec_hi, 0x3fffff")
        for p in range(7):
            A(f"s_add_u32 m0, s53, {p*864}")
            A("s_nop 0")
            ev["kv"] = A.vm("buffer_load_dwordx4 v7, s[28:31], 0 offen lds")
            if p < 6: A(f"v_add_u32 v7, {3*2*3456}, v7")
        A("s_mov_b64 exec, -1")
        A("v_lshrrev_b32 v9, 3, v0")
        A("s_lshl_b32 s54, s38, 3")
        A("v_add_u32 v9, s54, v9")
        A("v_lshlrev_b32 v10, 1, v9")
        A("v_add_u32 v10, s50, v10")
        A("v_and_b32 v11, 7, v0")
        A("v_mul_u32_u24 v12, 36, v11")
        A("v_mul_u32_u24 v13, 3456, v10")
        A("v_add3_u32 v13, v13, v12, s52")
        A.vm(f"buffer_load_dwordx4 {v(QR,4)}, v13, s[28:31], 0 offen")
        A.vm(f"buffer_load_dwordx4 {v(QR+4,4)}, v13, s[28:31], 0 offen offset:16")
        ev["q"] = A.vm(f"buffer_load_dword v{QR+8}, v13, s[28:31], 0 offen offset:32")
        A("s_lshl_b32 s46, s32, 3")
        A("s_lshl_b32 s47, s38, 1")
        A("s_add_u32 s46, s46, s47")
        A("s_mul_i32 s46, s46, 72")
        A("s_mul_i32 s47, s33, 9")
        A("s_lshr_b32 s47, s47, 1")
        A("s_add_u32 s46, s46, s47")
        A("s_lshl_b32 s46, s46, 10")
        for tt in range(2):
            for p in range(5):
                Rvm("z1", f"buffer_load_dwordx4 {v(Z1+(tt*5+p)*4,4)}, v6, s[20:23], s46 offen offset:{(p%4)*1024}")
                if p == 3: R("s_add_u32 s46, s46, 4096")
            if tt == 0: R(f"s_add_u32 s46, s46, {72*1024-4096}")
        R("v_mul_u32_u24 v14, 288, v9")
        R(f"v_add3_u32 v14, v14, v12, s55")
        R(f"v_add_u32 v15, {KVSZ}, v14")
        A(f"s_mov_b32 s55, {KV}")
        A("s_mov_b32 s56, 0xffff0000")
        A(f"v_mov_b32 v{TT+12}, {f32(C1)}")
        nsetup = len(Q)
        def win_reads(ad):
            for w in range(8):
                o = (7 - w) * 72
                for d in range(0, 9):
                    Rlg("win", f"ds_read_b32 v{KR+9*w+d}, {ad} offset:{(o+d)*4}")
        Rwv("q")
        for d in range(9):
            R(f"v_lshlrev_b32 v{QU+2*d}, 16, v{QR+d}")
            R(f"v_and_b32 v{QU+2*d+1}, s56, v{QR+d}")
        ev["att_start"] = len(Q)
        win_reads("v14")
        Rwl("win")
        for w in range(8):
            for d in range(9):
                x = KR + 9 * w + d
                t = TT + (d % 2) * 2
                R(f"v_lshlrev_b32 v{t}, 16, v{x}")
                R(f"v_and_b32 v{t+1}, s56, v{x}")
                if d < 2:
                    a_ = TT + 4 + d * 2
                    R(f"v_mul_f32 v{a_}, v{t}, v{QU+2*d}")
                    R(f"v_mul_f32 v{a_+1}, v{t+1}, v{QU+2*d+1}")
                else:
                    a_ = TT + 4 + (d % 2) * 2
                    R(f"v_fmac_f32 v{a_}, v{t}, v{QU+2*d}")
                    R(f"v_fmac_f32 v{a_+1}, v{t+1}, v{QU+2*d+1}")
            R(f"v_add_f32 v{TT+4}, v{TT+4}, v{TT+5}")
            R(f"v_add_f32 v{TT+6}, v{TT+6}, v{TT+7}")
            R(f"v_add_f32 v{LG+w}, v{TT+4}, v{TT+6}")
        win_reads("v15")
        sc = (18 ** -0.5) * 1.4426950408889634
        R(f"v_mov_b32 v{TT}, {f32(-1e9)}")
        for w in range(8): R(f"v_mul_f32 v{LG+w}, {f32(sc)}, v{LG+w}")
        for w in range(1, 8):
            def g(w=w):
                A(f"v_cmp_gt_u32 vcc, {2*w}, v10")
                A(f"v_cndmask_b32 v{LG+w}, v{LG+w}, v{TT}, vcc")
            Q.append(g)
        R(f"v_max3_f32 v{TT+1}, v{LG}, v{LG+1}, v{LG+2}")
        R(f"v_max3_f32 v{TT+2}, v{LG+3}, v{LG+4}, v{LG+5}")
        R(f"v_max3_f32 v{TT+1}, v{TT+1}, v{LG+6}, v{LG+7}")
        R(f"v_max_f32 v{TT+1}, v{TT+1}, v{TT+2}")
        for w in range(8): R(f"v_sub_f32 v{LG+w}, v{LG+w}, v{TT+1}")
        for w in range(8): R(f"v_exp_f32 v{LG+w}, v{LG+w}")
        R(f"v_add_f32 v{TT+1}, v{LG}, v{LG+1}")
        R(f"v_add_f32 v{TT+2}, v{LG+2}, v{LG+3}")
        R(f"v_add_f32 v{TT+3}, v{LG+4}, v{LG+5}")
        R(f"v_add_f32 v{TT+4}, v{LG+6}, v{LG+7}")
        R(f"v_add_f32 v{TT+1}, v{TT+1}, v{TT+2}")
        R(f"v_add_f32 v{TT+3}, v{TT+3}, v{TT+4}")
        R(f"v_add_f32 v{TT+1}, v{TT+1}, v{TT+3}")
        R(f"v_rcp_f32 v{TT+8}, v{TT+1}")
        Rwl("win")
        for w in range(8):
            for d in range(9):
                x = KR + 9 * w + d
                t = TT + (d % 2) * 2
                R(f"v_lshlrev_b32 v{t}, 16, v{x}")
                R(f"v_and_b32 v{t+1}, s56, v{x}")
                op = "v_mul_f32" if w == 0 else "v_fmac_f32"
                R(f"{op} v{OA+2*d}, v{t}, v{LG+w}")
                R(f"{op} v{OA+2*d+1}, v{t+1}, v{LG+w}")
        for d in range(18): R(f"v_mul_f32 v{OA+d}, v{OA+d}, v{TT+8}")
        R(f"v_lshrrev_b32 v{TT}, 4, v10")
        R(f"v_mul_u32_u24 v{TT}, 92160, v{TT}")
        R(f"v_and_b32 v{TT+1}, 15, v10")
        R(f"v_lshl_add_u32 v{TT}, v{TT+1}, 4, v{TT}")
        R(f"v_mul_u32_u24 v{TT+1}, 18, v11")
        R("s_mul_i32 s54, s51, 144")
        R(f"v_add_u32 v{TT+1}, s54, v{TT+1}")
        for d in range(9):
            a_ = KR + 10 + d
            R(f"v_cvt_pk_bf16_f32 v{KR+d}, v{OA+2*d}, v{OA+2*d+1}")
            R(f"v_add_u32 v{TT+2}, {2*d}, v{TT+1}")
            R(f"v_lshrrev_b32 v{TT+3}, 5, v{TT+2}")
            R(f"v_lshl_add_u32 v{a_}, v{TT+3}, 10, v{TT}")
            R(f"v_bfe_u32 v{TT+3}, v{TT+2}, 2, 2")
            R(f"v_lshl_add_u32 v{a_}, v{TT+3}, 8, v{a_}")
            R(f"v_bfe_u32 v{TT+3}, v{TT+2}, 4, 1")
            R(f"v_lshl_add_u32 v{a_}, v{TT+3}, 3, v{a_}")
            R(f"v_and_b32 v{TT+3}, 3, v{TT+2}")
            R(f"v_lshl_add_u32 v{a_}, v{TT+3}, 1, v{a_}")
            Rvm("o", f"buffer_store_dword v{KR+d}, v{a_}, s[24:27], 0 offen")
        Rwv("z1")
        for g_ in range(20):
            P = Z1 + 2 * g_
            X = [TT + r for r in range(4)]; U = [TT + 4 + r for r in range(4)]
            R(f"v_lshlrev_b32 v{X[0]}, 16, v{P}")
            R(f"v_and_b32 v{X[1]}, s56, v{P}")
            R(f"v_lshlrev_b32 v{X[2]}, 16, v{P+1}")
            R(f"v_and_b32 v{X[3]}, s56, v{P+1}")
            for r in range(4): R(f"v_mul_f32 v{U[r]}, v{X[r]}, v{X[r]}")
            for r in range(4): R(f"v_fmamk_f32 v{U[r]}, v{U[r]}, {f32(C2)}, v{TT+12}")
            for r in range(4): R(f"v_mul_f32 v{U[r]}, v{U[r]}, v{X[r]}")
            for r in range(4): R(f"v_exp_f32 v{U[r]}, v{U[r]}")
            for r in range(4): R(f"v_add_f32 v{U[r]}, 1.0, v{U[r]}")
            for r in range(4): R(f"v_rcp_f32 v{U[r]}, v{U[r]}")
            for r in range(4): R(f"v_mul_f32 v{X[r]}, v{X[r]}, v{U[r]}")
            R(f"v_cvt_pk_bf16_f32 v{P}, v{X[0]}, v{X[1]}")
            R(f"v_cvt_pk_bf16_f32 v{P+1}, v{X[2]}, v{X[3]}")
        if opt.get("no_fill"):
            del Q[nsetup:]
        def run(n):
            for _ in range(n):
                if Q: Q.pop(0)()
        A.wait_vm(tok[0])
        A("s_barrier")
        run(nsetup)
        A.wait_vm(tok[1])
        A("s_barrier")
        K0 = 2
        LAST = opt.get("last", 28)
        for k in range(NST):
            nf = -(-len(Q) // (LAST - k + 1)) if K0 <= k <= LAST else 0
            if k + 4 < NST:
                per = -(-nf // 8)
                issue(k + 4, lambda: run(per))
            else:
                run(nf)
            if k == 29:
                A("s_mul_i32 s47, s38, 10240")
                A("v_add_u32 v7, s47, v6")
                for q_ in range(10):
                    A.lg(f"ds_write_b128 v7, {v(Z1+4*q_,4)} offset:{q_*1024}")
            if k + 2 < NST: A.wait_vm(tok[k + 2])
            if k == K0 - 1: A.wait_vm(ev["kv"])
            if k == NST - 1: A.drain_lg()
            A("s_barrier")
        A("s_endpgm")
        return A.text()
    text += loader(5)
    text += L("ld4") + ":\n" + loader(4)
    text += L("end") + ":\n    s_endpgm\n"
    return text, kernel_desc(name, 256, 80), f"; @launch kernel={name} grid=(256,1,1) block=(512,1,1) lds=163840"
```

```python
from asmlib import *
from layout import *

SLOT = 17408
NS = 9
NST_S, NST_G = 9, 36
NST = NST_S + NST_G

def gen_k4(name="k4_kernel", opt=None):
    opt = opt or {}
    st_ = opt.get("stamp", None)
    NL = 5
    A = Asm()
    kernel_header(A, name)
    L = lambda s_: f"{name}_{s_}"
    A(f"s_cmp_ge_u32 s2, 256")
    A(f"s_cbranch_scc1 {L('end')}")
    if st_ is not None: stamp(A, 50)
    A("s_load_dwordx2 s[36:37], s[0:1], 80")
    A("s_load_dwordx2 s[4:5], s[0:1], 0")
    A("s_load_dwordx2 s[10:11], s[0:1], 64")
    A("s_and_b32 s40, s2, 7")
    A("s_lshr_b32 s41, s2, 3")
    A("s_lshr_b32 s32, s40, 1")
    A("s_lshl_b32 s32, s32, 3")
    A("s_lshr_b32 s42, s41, 2")
    A("s_add_u32 s32, s32, s42")
    A("s_and_b32 s33, s40, 1")
    A("s_lshl_b32 s33, s33, 2")
    A("s_and_b32 s42, s41, 3")
    A("s_add_u32 s33, s33, s42")
    if opt.get("same"):
        A("s_mov_b32 s32, s40")
        A("s_mov_b32 s33, s40")
    A("v_lshrrev_b32 v1, 6, v0")
    A("v_and_b32 v0, 63, v0")
    A("v_readfirstlane_b32 s34, v1")
    A("s_nop 3")
    A("s_cmp_ge_u32 s34, 4")
    A(f"s_cbranch_scc1 {L('loader')}")

    YF, WF = [8, 36], [16, 44]
    ACS, ACG = 64, 104
    XR = 144
    A("s_and_b32 s38, s34, 1")
    A("s_lshr_b32 s39, s34, 1")
    A("s_lshl_b32 s40, s32, 6")
    A("s_lshl_b32 s41, s38, 5")
    A("s_add_u32 s40, s40, s41")
    A("s_lshl_b32 s41, s39, 4")
    A("s_add_u32 s40, s40, s41")
    A("v_and_b32 v1, 15, v0")
    A("v_add_u32 v1, s40, v1")
    A("v_mul_u32_u24 v1, 1152, v1")
    A("v_lshrrev_b32 v2, 4, v0")
    A("v_lshlrev_b32 v3, 3, v2")
    A("s_mul_i32 s41, s33, 144")
    A("v_add3_u32 v7, v1, v3, s41")
    A("s_mul_i32 s41, s39, 4608")
    A("s_add_u32 s41, s41, 8192")
    A("v_lshlrev_b32 v3, 7, v2")
    A("v_and_b32 v4, 7, v0")
    A("v_lshl_add_u32 v3, v4, 4, v3")
    A("v_add_u32 v3, s41, v3")
    A("v_lshlrev_b32 v1, 4, v0")
    A("v_add_u32 v2, s41, v1")
    A("s_lshl_b32 s40, s38, 2")
    A("s_add_u32 s40, s40, s39")
    A("s_lshl_b32 s40, s40, 10")
    A("v_add_u32 v1, s40, v1")
    A("s_waitcnt lgkmcnt(0)")
    srd(A, 12, 4, S * D * 2)
    srd(A, 16, 10, S * D * 2)
    for dt in range(5):
        A(f"buffer_load_dwordx2 {v(XR+2*dt,2)}, v7, s[12:15], 0 offen offset:{dt*32}")
    PFD = opt.get("pfd", 0)
    if PFD:
        A("s_cmp_eq_u32 s34, 0")
        A(f"s_cselect_b32 s20, {WS_YC}, 0")
        A(f"s_cselect_b32 s22, {SZ_YC}, 0")
        A("s_cselect_b32 s45, 4096, 0")
        A("s_cmp_eq_u32 s34, 1")
        A(f"s_cselect_b32 s20, {WS_WP}, s20")
        A(f"s_cselect_b32 s22, {SZ_WP}, s22")
        A("s_cselect_b32 s45, 18432, s45")
        A("s_add_u32 s20, s20, s36")
        A("s_addc_u32 s21, s37, 0")
        A("s_mov_b32 s23, 0x00020000")
        A("s_lshl_b32 s46, s32, 2")
        A("s_and_b32 s47, s33, 3")
        A("s_add_u32 s46, s46, s47")
        A(f"s_mul_i32 s46, s46, {90*1024}")
        A(f"s_mul_i32 s47, s33, {90*4608}")
        A("s_and_b32 s44, s32, 7")
        A("s_mul_i32 s44, s44, 2304")
        A("s_add_u32 s47, s47, s44")
        A("s_cmp_eq_u32 s34, 0")
        A("s_cselect_b32 s44, s46, s47")
        A("s_mul_i32 s46, s45, 4")
        A("s_add_u32 s44, s44, s46")
        A("v_lshlrev_b32 v154, 6, v0")
        for q in range(PFD // 2 - 4):
            A("buffer_load_dword v155, v154, s[20:23], s44 offen")
            A("s_add_u32 s44, s44, s45")
    for r in range(80):
        A(f"v_mov_b32 v{ACS+r}, 0")
    A("s_mov_b32 s42, 0")
    A("s_mov_b32 s43, 0")

    def reads(st):
        o = [f"ds_read_b128 {v(YF[st],4)}, v4", f"ds_read_b128 {v(WF[st],4)}, v5", f"ds_read_b128 {v(YF[st]+4,4)}, v4 offset:2048"]
        for dt in range(1, 4):
            o.append(f"ds_read_b128 {v(WF[st]+4*dt,4)}, v5 offset:{dt*1024}")
        o.append(f"ds_read_b128 {v(WF[st]+16,4)}, v6 offset:4096")
        return o
    def addr():
        A("v_add_u32 v4, s42, v1")
        A("v_add_u32 v5, s42, v2")
        A("v_add_u32 v6, s42, v3")
        A(f"s_add_u32 s42, s42, {SLOT}")
        A(f"s_cmp_eq_u32 s42, {NS*SLOT}")
        A("s_cselect_b32 s42, 0, s42")
    def body(ACC, st, cmp=None):
        rd = reads(st ^ 1)
        n = 0
        for dt in range(5):
            for a_ in range(2):
                c = ACC + (a_ * 5 + dt) * 4
                if rd and not opt.get("no_compute"): A(rd.pop(0))
                if not opt.get("no_compute") and not opt.get("no_mfma"):
                    A(f"v_mfma_f32_16x16x32_bf16 {v(c,4)}, {v(WF[st]+4*dt,4)}, {v(YF[st]+4*a_,4)}, {v(c,4)}")
                n += 1
                if opt.get("space"): A(f"s_nop {opt['space']}")
                if n == 8:
                    addr()
                    if cmp and PFD:
                        A("buffer_load_dword v155, v154, s[20:23], s44 offen")
                        A("s_add_u32 s44, s44, s45")
                    if cmp:
                        A("s_add_u32 s43, s43, 1")
                        A(f"s_cmp_lt_u32 s43, {cmp}")
        A("s_waitcnt lgkmcnt(0)")
        A("s_barrier")

    addr()
    A("s_barrier")
    for r in reads(0): A(r)
    addr()
    A("s_waitcnt lgkmcnt(0)")
    A("s_barrier")
    if st_ is not None:
        stamp(A, 52); A("s_memtime s[64:65]")
    A.label(L("sloop"))
    body(ACS, 0); body(ACS, 1, 4)
    A(f"s_cbranch_scc1 {L('sloop')}")
    body(ACS, 0)
    A.label(L("gloop"))
    body(ACG, 1); body(ACG, 0, 4 + NST_G // 2)
    A(f"s_cbranch_scc1 {L('gloop')}")
    if st_ is not None:
        stamp(A, 54); A("s_memtime s[66:67]")
    A("s_mul_i32 s40, s34, 10240")
    A("v_lshlrev_b32 v1, 4, v0")
    A("v_add_u32 v2, s40, v1")
    A("s_xor_b32 s41, s34, 2")
    A("s_mul_i32 s41, s41, 10240")
    A("v_add_u32 v3, s41, v1")
    A("s_cmp_eq_u32 s39, 0")
    A(f"s_cbranch_scc0 {L('j1')}")
    for jj in range(2):
        if jj == 1:
            A.label(L("j1"))
        A("s_nop 4")
        keep, send = jj, 1 - jj
        n = 0
        for ACC in (ACG, ACS):
            for dt in range(5):
                A(f"ds_write_b128 v2, {v(ACC+(send*5+dt)*4,4)} offset:{n*1024}")
                n += 1
        A("s_waitcnt lgkmcnt(0)")
        A("s_barrier")
        P = 8
        for n in range(10):
            A(f"ds_read_b128 {v(P+4*n,4)}, v3 offset:{n*1024}")
        A("s_mov_b32 s40, 0xbfb8aa3b")
        A("s_mov_b32 s41, 0xffff0000")
        T = 48
        for dt in range(5):
            cg = ACG + (keep * 5 + dt) * 4
            A(f"s_waitcnt lgkmcnt({9-dt})")
            for r in range(4):
                A(f"v_add_f32 v{cg+r}, v{cg+r}, v{P+4*dt+r}")
            t = ACG + (send * 5 + dt) * 4
            for r in range(4):
                A(f"v_mul_f32 v{t+r}, s40, v{cg+r}")
            for r in range(4):
                A(f"v_exp_f32 v{t+r}, v{t+r}")
            for r in range(4):
                A(f"v_add_f32 v{t+r}, 1.0, v{t+r}")
            for r in range(4):
                A(f"v_rcp_f32 v{t+r}, v{t+r}")
        A("s_waitcnt vmcnt(0) lgkmcnt(0)")
        for dt in range(5):
            cs = ACS + (keep * 5 + dt) * 4
            cg = ACG + (keep * 5 + dt) * 4
            t = ACG + (send * 5 + dt) * 4
            for r in range(4):
                A(f"v_add_f32 v{cs+r}, v{cs+r}, v{P+20+4*dt+r}")
            A(f"v_lshlrev_b32 v{T+4}, 16, v{XR+2*dt}")
            A(f"v_and_b32 v{T+5}, s41, v{XR+2*dt}")
            A(f"v_lshlrev_b32 v{T+6}, 16, v{XR+2*dt+1}")
            A(f"v_and_b32 v{T+7}, s41, v{XR+2*dt+1}")
            for r in range(4):
                A(f"v_mul_f32 v{t+r}, v{t+r}, v{cg+r}")
            for r in range(4):
                A(f"v_fma_f32 v{t+r}, v{t+r}, v{cs+r}, v{T+4+r}")
            A(f"v_cvt_pk_bf16_f32 v{XR+2*dt}, v{t}, v{t+1}")
            A(f"v_cvt_pk_bf16_f32 v{XR+2*dt+1}, v{t+2}, v{t+3}")
            if dt == 4:
                A("s_mov_b32 exec_hi, 0")
            A(f"buffer_store_dwordx2 {v(XR+2*dt,2)}, v7, s[16:19], 0 offen offset:{dt*32}")
        if st_ is not None and jj == 0:
            A("s_mov_b64 exec, -1")
            A("s_cmp_eq_u32 s34, 0")
            A(f"s_cbranch_scc0 {L('end')}")
            stamp_store(A, 36, st_, [50, 52, 54, 64, 66, 56], 60)
        A("s_endpgm")

    A.label(L("loader"))
    A("s_sub_u32 s38, s34, 4")
    A("s_lshl_b32 s40, s32, 2")
    A("s_add_u32 s40, s40, s38")
    A("v_lshlrev_b32 v3, 4, v0")
    A(f"s_mul_i32 s41, s40, {90*1024}")
    A("v_add_u32 v1, s41, v3")
    A(f"s_mul_i32 s41, s33, {90*4608}")
    A("s_lshl_b32 s47, s38, 11")
    A("s_add_u32 s41, s41, s47")
    A("v_add_u32 v2, s41, v3")
    A("s_lshl_b32 s40, s38, 11")
    A("s_add_u32 s41, s47, 8192")
    A("s_mov_b32 s42, 0")
    A("s_mov_b32 s43, 0")
    A("s_mov_b32 s46, 0")
    A("s_mov_b32 s48, 0")
    A("s_waitcnt lgkmcnt(0)")
    srd(A, 12, 36, SZ_YC, WS_YC)
    srd(A, 16, 36, SZ_WP, WS_WP)
    A("s_cmp_eq_u32 s38, 3")
    A(f"s_cbranch_scc1 {L('ld5')}")
    for NL in (4, 5):
        if NL == 5: A.label(L("ld5"))
        def issue():
            A("s_add_u32 m0, s40, s46")
            A("s_add_u32 s47, s41, s46")
            A(f"buffer_load_dwordx4 v1, s[12:15], s42 offen lds")
            A(f"buffer_load_dwordx4 v1, s[12:15], s42 offen offset:1024 lds")
            A("s_mov_b32 m0, s47")
            A("s_add_u32 s42, s42, 2048")
            A(f"buffer_load_dwordx4 v2, s[16:19], s43 offen lds")
            A(f"buffer_load_dwordx4 v2, s[16:19], s43 offen offset:1024 lds")
            if NL == 5:
                A(f"buffer_load_dwordx4 v2, s[16:19], s43 offen offset:2048 lds")
            A(f"s_add_u32 s43, s43, 9216")
            A(f"s_add_u32 s46, s46, {SLOT}")
            A(f"s_cmp_eq_u32 s46, {NS*SLOT}")
            A("s_cselect_b32 s46, 0, s46")
        A.label(L(f"ploop{NL}"))
        issue()
        A("s_add_u32 s48, s48, 1")
        A(f"s_cmp_lt_u32 s48, {NS}")
        A(f"s_cbranch_scc1 {L(f'ploop{NL}')}")
        A(f"s_waitcnt vmcnt({NL*8})")
        A("s_barrier")
        A(f"s_waitcnt vmcnt({NL*7})")
        A("s_barrier")
        A.label(L(f"lloop{NL}"))
        issue()
        A("s_add_u32 s48, s48, 1")
        A(f"s_cmp_lt_u32 s48, {NST}")
        A(f"s_waitcnt vmcnt({NL*7})")
        A("s_barrier")
        A(f"s_cbranch_scc1 {L(f'lloop{NL}')}")
        for k in range(36, NST):
            A(f"s_waitcnt vmcnt({NL*max(0, NST-1-(k+2))})")
            A("s_barrier")
        A("s_endpgm")
    A.label(L("end"))
    A("s_endpgm")
    return A.text(), kernel_desc(name, 160, 80), f"; @launch kernel={name} grid=(256,1,1) block=(512,1,1) lds={NS*SLOT}"
```

```python
S, D, F, FH = 2048, 576, 4608, 2304
WS_Z2N = 0
SZ_Z = S * FH * 2
WS_Z1 = WS_Z2N + SZ_Z
WS_YC = WS_Z1 + SZ_Z
SZ_YC = 128 * 90 * 1024
WS_QKV = WS_YC + SZ_YC
SZ_QKV = S * 1728 * 2
WS_WP = WS_QKV + SZ_QKV
SZ_WP = 8 * 90 * 4608
WS_STAT = WS_WP + SZ_WP
SZ_STAT = 16 * 16 * 128 * 16
WS_FLAG = WS_STAT + SZ_STAT
SZ_FLAG = 3072 + 4096 + 4096 + 4096
WS_END = WS_FLAG + SZ_FLAG
WS_DIAG = 64 << 20
```

```python
class Asm:
    def __init__(self):
        self.lines = []
        self._lab = 0
    def __call__(self, s):
        for l in s.strip("\n").split("\n"):
            self.lines.append("    " + l.strip())
    def label(self, name):
        self.lines.append(name + ":")
    def newlabel(self, base="L"):
        self._lab += 1
        return f"{base}_{self._lab}"
    def comment(self, s):
        self.lines.append("    ; " + s)
    def raw(self, s):
        self.lines.append(s)
    def text(self):
        return "\n".join(self.lines) + "\n"

def v(i, n=1):
    return f"v{i}" if n == 1 else f"v[{i}:{i+n-1}]"
def s(i, n=1):
    return f"s{i}" if n == 1 else f"s[{i}:{i+n-1}]"
def a(i, n=1):
    return f"a{i}" if n == 1 else f"a[{i}:{i+n-1}]"

def kernel_header(A, name):
    A.raw(".text")
    A.raw(f".globl {name}")
    A.raw(".p2align 8")
    A.raw(f".type {name},@function")
    A.label(name)

def kernel_desc(name, vgpr, sgpr=102, accum=None):
    if accum is None:
        accum = (vgpr + 3) // 4 * 4
    return f""".section .rodata,"a"
.p2align 6
.amdhsa_kernel {name}
  .amdhsa_next_free_vgpr {vgpr}
  .amdhsa_next_free_sgpr {sgpr}
  .amdhsa_accum_offset {accum}
  .amdhsa_group_segment_fixed_size 0
  .amdhsa_kernarg_size 88
  .amdhsa_user_sgpr_count 2
  .amdhsa_user_sgpr_kernarg_segment_ptr 1
  .amdhsa_system_sgpr_workgroup_id_x 1
.end_amdhsa_kernel
"""

def srd(A, d, base, nbytes, off=0):
    if off == 0:
        A(f"s_mov_b32 s{d}, s{base}")
        A(f"s_mov_b32 s{d+1}, s{base+1}")
    else:
        A(f"s_add_u32 s{d}, s{base}, {off}")
        A(f"s_addc_u32 s{d+1}, s{base+1}, 0")
    A(f"s_mov_b32 s{d+2}, {nbytes}")
    A(f"s_mov_b32 s{d+3}, 0x00020000")

def stamp(A, sreg):
    A(f"s_memrealtime s[{sreg}:{sreg+1}]")

def stamp_store(A, wsreg, kidx, sregs, tmp_s, vtmp=1):
    from layout import WS_DIAG
    A("s_waitcnt vmcnt(0) lgkmcnt(0)")
    if sregs[-1] == 90 or sregs[-1] < 90 and sregs[-1] not in (96,): A(f"s_memrealtime s[{sregs[-1]}:{sregs[-1]+1}]")
    srd(A, tmp_s, wsreg, 1 << 20, WS_DIAG + kidx * 512 * 32)
    A("s_waitcnt lgkmcnt(0)")
    A(f"s_lshl_b32 s{sregs[-1]+1}, s2, 5")
    A(f"v_mov_b32 v{vtmp}, s{sregs[-1]+1}")
    for i, r in enumerate(sregs):
        A(f"v_mov_b32 v{vtmp+1}, s{r}")
        A(f"buffer_store_dword v{vtmp+1}, v{vtmp}, s[{tmp_s}:{tmp_s+3}], 0 offen offset:{i*4}")
    A("s_waitcnt vmcnt(0)")

class Stream(Asm):
    def __init__(self):
        super().__init__()
        self.nvm = 0; self.vm_done = -1
        self.nlg = 0; self.lg_done = -1
    def vm(self, t):
        self(t); self.nvm += 1; return self.nvm - 1
    def lg(self, t):
        self(t); self.nlg += 1; return self.nlg - 1
    def vm_opt(self, t):
        self(t); return self.nvm - 0.5
    def wait_vm(self, tok):
        if tok is None or tok <= self.vm_done: return
        import math
        n = self.nvm - math.floor(tok) - 1
        if n > 63:
            n = 63; self.vm_done = self.nvm - n - 1
        else:
            self.vm_done = tok
        self(f"s_waitcnt vmcnt({n})")
    def wait_lg(self, tok):
        if tok is None or tok <= self.lg_done: return
        n = self.nlg - tok - 1
        if n > 15: n = 15
        self(f"s_waitcnt lgkmcnt({n})"); self.lg_done = self.nlg - n - 1
    def drain_lg(self): self.wait_lg(self.nlg - 1)
    def drain_vm(self): self.wait_vm(self.nvm - 1)
```

```python
from asmlib import *
from layout import *
import struct

def f32(x): return "0x%08x" % struct.unpack("<I", struct.pack("<f", x))[0]

SLOT = 18432
XA = 6 * SLOT
XP = 416
SA = 147456
NA = SA + 8192
SB = NA + 2048
C1 = -2.0 * 0.7978845608028654 * 1.4426950408889634
C2 = C1 * 0.044715

V_TR, V_D0, V_C1, V_SE, V_SO = 1, 2, 5, 6, 7
V_ST = 8
T = 12
BF = [20, 24, 28, 252]
ACC = 32
PP = 72
AX = 108
def XRG(n):
    if n < 6: return ACC + 4 * n
    if n < 9: return AX + (12 + n - 6) * 4
    return PP + 4 * (n - 9)
SPIN = 200000
JOB = ["z2", "qkv", "z1"]
PITCH = [288, 224, 288]

def gen_k1(name="k1_kernel", opt=None):
    opt = opt or {}
    st_ = opt.get("stamp", None)
    PUB_STAGE = opt.get("pub", 18)
    POLL_STAGE = opt.get("poll", 21)
    FIN_STAGE = opt.get("fin", 22)
    NRM_STAGE = opt.get("nrm", 25)
    ZF_STAGE = opt.get("zf", 26)
    MEGA = opt.get("mega")
    KST = st_ is not None and not MEGA
    WT = opt.get("wt", "sc1" if MEGA else "")
    WTL = opt.get("wtl", "sc1" if MEGA else "")
    TRR = [82, 83, 84, 85, 86, 87, 88, 89, 90, 91, 96, 97, 98, 99, 81]
    TRS = opt.get("trs", list(range(1, 16)))
    H = Asm()
    kernel_header(H, name)
    L = lambda s_: f"{name}_{s_}"
    H("s_cmp_ge_u32 s2, 256")
    H(f"s_cbranch_scc1 {L('end')}")
    H("s_load_dwordx4 s[4:7], s[0:1], 0")
    H("s_load_dwordx4 s[8:11], s[0:1], 32")
    H("s_load_dwordx4 s[44:47], s[0:1], 72")
    H("s_memrealtime s[80:81]")
    H("s_load_dwordx2 s[72:73], s[0:1], 16")
    H("s_load_dwordx2 s[74:75], s[0:1], 56")
    H("s_and_b32 s50, s2, 7")
    H("s_lshr_b32 s51, s2, 3")
    H("s_lshr_b32 s48, s50, 2")
    H("s_lshl_b32 s48, s48, 3")
    H("s_lshr_b32 s52, s51, 2")
    H("s_add_u32 s48, s48, s52")
    H("s_and_b32 s49, s50, 3")
    H("s_lshl_b32 s49, s49, 2")
    H("s_and_b32 s52, s51, 3")
    H("s_add_u32 s49, s49, s52")
    H("v_lshrrev_b32 v1, 6, v0")
    H("v_and_b32 v0, 63, v0")
    H("v_readfirstlane_b32 s50, v1")
    H("v_lshrrev_b32 v1, 2, v0")
    H("s_lshl_b32 s52, s48, 7")
    H("s_lshl_b32 s53, s50, 4")
    H("s_add_u32 s52, s52, s53")
    H("v_add_u32 v2, s52, v1")
    H("v_mul_u32_u24 v2, 1152, v2")
    H("v_and_b32 v3, 3, v0")
    H("v_lshl_add_u32 v12, v3, 4, v2")
    H("s_and_b32 s51, s50, 3")
    H("s_lshl_b32 s52, s50, 7")
    H("s_and_b32 s56, s51, 1")
    H("s_lshl_b32 s56, s56, 6")
    H("s_add_u32 s56, s56, 1024")
    H("s_mul_i32 s53, s49, 288")
    for p in range(3):
        H(f"v_add_u32 v13, {'s52' if p < 2 else 's56'}, v0")
        if p == 1: H("v_add_u32 v13, 64, v13")
        H("v_mul_u32_u24 v14, 3641, v13")
        H("v_lshrrev_b32 v14, 16, v14")
        H("v_mul_u32_u24 v15, 18, v14")
        H("v_sub_u32 v13, v13, v15")
        H("v_mul_u32_u24 v14, 9216, v14")
        H("v_lshlrev_b32 v13, 4, v13")
        H(f"v_add3_u32 v{V_D0+p}, v14, v13, s53")
        if p == 1: H(f"v_subrev_u32 v{V_D0+p}, 1024, v{V_D0+p}")
    H("s_lshl_b32 s54, s50, 11")
    H("s_lshl_b32 s56, s56, 4")
    H("s_lshl_b32 s55, s50, 10")
    H("s_waitcnt lgkmcnt(0)")
    srd(H, 12, 4, S * D * 2)
    text = H.text()

    A = Stream()
    xt = [A.vm(f"buffer_load_dwordx4 {v(XRG(n),4)}, v12, s[12:15], 0 offen offset:{n*64}") for n in range(18)]
    srd(A, 16, 8, D * F * 2)
    srd(A, 20, 6, D * 1728 * 2)

    dma_tok = {}; slot_of = {}
    lab = [0]
    def dma_items(A, st, slot, j):
        slot_of[st] = slot
        if opt.get("no_dma"): return []
        job = st // 9
        if JOB[job] != "qkv":
            so = (4608 if JOB[job] == "z2" else 0) + (st % 9) * 64 * 9216
            def a0():
                A(f"s_add_u32 m0, s54, {slot*SLOT}")
                A(f"s_mov_b32 s60, {so}")
                A.vm(f"buffer_load_dwordx4 v{V_D0}, s[16:19], s60 offen lds")
            def a1():
                dma_tok[st] = A.vm(f"buffer_load_dwordx4 v{V_D0+1}, s[16:19], s60 offen offset:1024 lds")
            def a2():
                lab[0] += 1; lb = L(f"x{lab[0]}")
                if j is None:
                    A(f"s_cmp_eq_u32 s57, {st & 1}")
                else:
                    A("s_cmp_lt_u32 s51, 2")
                A(f"s_cbranch_scc0 {lb}")
                A(f"s_add_u32 m0, s56, {slot*SLOT}")
                A("s_nop 0")
                dma_tok[st] = A.vm_opt(f"buffer_load_dwordx4 v{V_D0+2}, s[16:19], s60 offen lds")
                A.label(lb)
            return [a0, a1, a2] if (j is None or j == (st & 1)) else [a0, a1]
        else:
            so = (st % 9) * 64 * 3456
            def a0():
                A(f"s_add_u32 m0, s55, {slot*SLOT}")
                A(f"s_mov_b32 s60, {so}")
                dma_tok[st] = A.vm(f"buffer_load_dwordx4 v{V_SE}, s[20:23], s60 offen lds")
            def a1():
                lab[0] += 1; lb = L(f"x{lab[0]}")
                A("s_cmp_lt_u32 s51, 3")
                A(f"s_cbranch_scc0 {lb}")
                A(f"s_add_u32 m0, s58, {slot*SLOT}")
                A("s_nop 0")
                dma_tok[st] = A.vm_opt(f"buffer_load_dwordx4 v{V_SO}, s[20:23], s60 offen lds")
                A.label(lb)
            return [a0, a1]
    def dma(A, st, slot):
        for it in dma_items(A, st, slot, None): it()
    A("s_lshr_b32 s57, s50, 2")
    A("s_cmp_lt_u32 s51, 2")
    A("s_cselect_b32 s57, s57, 2")
    NI = 6
    NI0 = opt.get("ni0", 2)
    opt_later = []
    for st in range(NI0):
        it = dma_items(A, st, st, None)
        for f_ in it[:2]: f_()
        if len(it) > 2:
            so_ = 4608 + st * 64 * 9216
            opt_later.append((so_, it[2]))
    srd(A, 24, 46, SZ_Z, WS_Z2N)
    srd(A, 28, 46, SZ_Z, WS_Z1)
    srd(A, 32, 46, SZ_QKV, WS_QKV)
    srd(A, 36, 46, SZ_STAT, WS_STAT)
    srd(A, 40, 44, 256)
    A("s_mov_b32 s3, 0" if MEGA else "s_lshl_b32 s3, s48, 2")
    A("s_mov_b32 s61, 0x3f803f80")
    A("s_mov_b32 s62, 0xffff0000")
    A("s_mul_i32 s67, s49, 27")
    A("s_lshr_b32 s67, s67, 2")
    A("s_lshl_b32 s67, s67, 5")
    A("s_lshr_b32 s58, s50, 2")
    A("s_mul_i32 s58, s58, 3")
    A("s_add_u32 s58, s58, s51")
    A("s_add_u32 s58, s58, 8")
    A("s_lshl_b32 s58, s58, 6")
    A("s_lshl_b32 s52, s50, 6")
    for p in range(2):
        A(f"v_add_u32 v13, {'s52' if p == 0 else 's58'}, v0")
        A("v_mul_u32_u24 v14, 4682, v13")
        A("v_lshrrev_b32 v14, 16, v14")
        A("v_mul_u32_u24 v15, 14, v14")
        A("v_sub_u32 v13, v13, v15")
        A("v_mul_u32_u24 v14, 3456, v14")
        A("v_lshlrev_b32 v13, 4, v13")
        A(f"v_add3_u32 v{V_SE+p}, v14, v13, s67")
    A("s_lshl_b32 s58, s58, 4")
    A("s_lshl_b32 s52, s50, 4")
    A("v_add_u32 v13, s52, v1")
    A(f"v_mul_u32_u24 v13, {XP}, v13")
    A("v_and_b32 v15, 1, v0")
    A("v_lshlrev_b32 v15, 5, v15")
    A("v_and_b32 v16, 2, v0")
    A("v_lshlrev_b32 v16, 2, v16")
    A("v_add3_u32 v13, v13, v15, v16")
    A(f"v_add_u32 v13, {XA}, v13")
    A("v_and_b32 v14, 15, v0")
    A("s_lshl_b32 s52, s51, 5")
    A("v_add_u32 v14, s52, v14")
    A(f"v_mul_u32_u24 v14, {XP}, v14")
    A("v_lshrrev_b32 v15, 4, v0")
    A("v_lshl_add_u32 v14, v15, 4, v14")
    A(f"v_add_u32 v14, {XA}, v14")
    A(f"v_mul_u32_u24 v{V_TR}, 288, v1")
    A("v_and_b32 v15, 3, v0")
    A(f"v_lshl_add_u32 v{V_TR}, v15, 3, v{V_TR}")
    for r in range(4):
        A(f"v_mov_b32 v{V_ST+r}, 0")
    if KST:
        A.wait_vm(xt[17]); stamp(A, 96)
    for n in range(18):
        A.wait_vm(xt[n])
        for r in range(4):
            x = XRG(n) + r
            A(f"v_dot2_f32_bf16 v{V_ST+(r&1)*2}, v{x}, s61, v{V_ST+(r&1)*2}")
            A(f"v_dot2_f32_bf16 v{V_ST+(r&1)*2+1}, v{x}, v{x}, v{V_ST+(r&1)*2+1}")
    A(f"v_add_f32 v{V_ST}, v{V_ST}, v{V_ST+2}")
    A(f"v_add_f32 v{V_ST+1}, v{V_ST+1}, v{V_ST+3}")
    for qp in ("[1,0,3,2]", "[2,3,0,1]"):
        A(f"v_add_f32_dpp v{V_ST}, v{V_ST}, v{V_ST} quad_perm:{qp} row_mask:0xf bank_mask:0xf")
        A(f"v_add_f32_dpp v{V_ST+1}, v{V_ST+1}, v{V_ST+1} quad_perm:{qp} row_mask:0xf bank_mask:0xf")
    A(f"v_mul_f32 v{V_ST}, {f32(1.0/576)}, v{V_ST}")
    A(f"v_mul_f32 v{V_ST+1}, {f32(1.0/576)}, v{V_ST+1}")
    A(f"v_fma_f32 v{V_ST+1}, -v{V_ST}, v{V_ST}, v{V_ST+1}")
    A(f"v_max_f32 v{V_ST+1}, 0, v{V_ST+1}")
    A(f"v_add_f32 v{V_ST+1}, {f32(1e-5)}, v{V_ST+1}")
    A(f"v_rsq_f32 v{V_ST+2}, v{V_ST+1}")
    A(f"v_mul_f32 v{V_ST}, -v{V_ST}, v{V_ST+2}")
    if KST: stamp(A, 98); A("s_waitcnt lgkmcnt(0)")
    for so_, f_ in opt_later:
        A(f"s_mov_b32 s60, {so_}"); f_()
    A("s_or_b32 s71, s80, 1")
    A(f"v_mov_b32 v16, s71")
    A("s_lshl_b32 s52, s50, 6")
    A("s_lshl_b32 s53, s2, 9" if MEGA else "s_lshl_b32 s53, s49, 9")
    A("s_add_u32 s52, s52, s53")
    A("v_add_u32 v17, s52, v0")
    A("v_lshlrev_b32 v17, 12, v17")
    A("s_cmp_eq_u32 s52, 0")
    A(f"s_cbranch_scc0 {L('nn')}")
    A.vm_opt(f"buffer_store_dword v16, v17, s[40:43], s3 offen sc1")
    A.label(L("nn"))
    late_dma = []
    for st in range(NI0, NI): late_dma += dma_items(A, st, st, None)
    def norm_ins(n):
        out = []
        for r in range(0, 4, 2):
            for e in range(2):
                x = XRG(n) + r + e; t = 16 + e * 2
                out.append(f"v_lshlrev_b32 v{t}, 16, v{x}")
                out.append(f"v_and_b32 v{t+1}, s62, v{x}")
            for e in range(4):
                out.append(f"v_fma_f32 v{16+e}, v{16+e}, v{V_ST+2}, v{V_ST}")
            for e in range(2):
                x = XRG(n) + r + e; t = 16 + e * 2
                out.append(f"v_cvt_pk_bf16_f32 v{x}, v{t}, v{t+1}")
        return out
    def xwrite(A, n):
        x = XRG(n)
        o = (n % 6) * 8
        return A.lg(f"ds_write2_b64 v13, {v(x,2)}, {v(x+2,2)} offset0:{o} offset1:{o+2}")
    for n in range(6):
        for q_, s_ in enumerate(norm_ins(n)):
            A(s_)
            if q_ % 10 == 9 and late_dma: late_dma.pop(0)()
        xwrite(A, n)
    A.drain_lg()
    A("s_barrier")
    for c in range(6):
        for rt in range(2):
            A.lg(f"ds_read_b128 {v(AX+(rt*18+c)*4,4)}, v14 offset:{rt*16*XP + c*64}")
    while late_dma: late_dma.pop(0)()
    if opt.get("tlb", 1):
        A("s_load_dwordx2 s[82:83], s[0:1], 64" if not (st_ is not None or opt.get("trace")) else "s_load_dwordx2 s[100:101], s[0:1], 64")
        O = 82 if not (st_ is not None or opt.get("trace")) else 100
        A("s_lshr_b32 s52, s2, 3")
        A("s_lshl_b32 s52, s52, 3")
        A("s_add_u32 s52, s52, s50")
        A("s_and_b32 s52, s52, 31")
        A("s_lshl_b32 s53, s52, 21")
        A("s_add_u32 s4, s46, s53")
        A("s_addc_u32 s5, s47, 0")
        A("s_waitcnt lgkmcnt(0)")
        for lo, reg in ((22, 10), (26, 72), (27, 74), (29, O)):
            A(f"s_sub_u32 s53, s52, {lo}")
            A("s_lshl_b32 s53, s53, 21" if lo == 22 else "s_lshl_b32 s53, s53, 20")
            A(f"s_add_u32 s6, s{reg}, s53")
            A(f"s_addc_u32 s7, s{reg+1}, 0")
            A(f"s_cmp_ge_u32 s52, {lo}")
            A("s_cselect_b32 s4, s6, s4")
            A("s_cselect_b32 s5, s7, s5")
        A("v_mov_b32 v12, 0")
        A("s_mov_b64 exec, 1")
        A.vm("global_load_dword v12, v12, s[4:5]")
        A("s_mov_b64 exec, -1")
    A.wait_vm(dma_tok.get(1))
    A.drain_lg()
    A("s_barrier")
    if st_ is not None: stamp(A, 82); A.nlg += 2; A.drain_lg()
    A(f"v_mov_b32 v{V_C1}, {f32(C1)}")
    A("s_cmp_ge_u32 s50, 4")
    A(f"s_cbranch_scc1 {L('j1')}")
    text += A.text()
    base = A

    def program(j):
        A = Stream()
        A.nvm, A.vm_done, A.nlg, A.lg_done = base.nvm, base.vm_done, base.nlg, base.lg_done
        tiles = [list(range(0, 5)), list(range(0, 4)), list(range(0, 4))] if j == 0 else [list(range(5, 9)), list(range(4, 7)), list(range(4, 9))]
        PA = PP
        PB = PP + 4 * len(tiles[0])
        pend = [PA, PB]
        acc = lambda a_, rt: ACC + (a_ * 2 + rt) * 4
        FR = []
        for job in range(3):
            for s9 in range(9):
                for c in range(2):
                    for ai, t in enumerate(tiles[job]):
                        FR.append((job, job * 9 + s9, c, ai, t))
        first_slot = {}
        for n, fr in enumerate(FR):
            first_slot.setdefault(fr[1], 2 * n)
        first_slot[27] = 2 * len(FR)
        rtok = {}
        state = dict(cur_stage=0, mstage=0)
        ev = {}
        def issue_read(n):
            job, st, c, ai, t = FR[n]
            b = BF[n % 4]
            p = PITCH[job]
            if st != state["cur_stage"]:
                d = (slot_of[st] - slot_of[st - 1]) * SLOT
                A(f"v_add_u32 v{V_TR}, {d}, v{V_TR}" if d > 0 else f"v_subrev_u32 v{V_TR}, {-d}, v{V_TR}")
                if st % 9 == 0:
                    A(f"v_lshrrev_b32 v{b}, 2, v0")
                    A(f"v_lshlrev_b32 v{b}, 6, v{b}")
                    A(f"v_sub_u32 v{V_TR}, v{V_TR}, v{b}" if p < PITCH[job-1] else f"v_add_u32 v{V_TR}, v{V_TR}, v{b}")
                state["cur_stage"] = st
            A.lg(f"ds_read_b64_tr_b16 {v(b,2)}, v{V_TR} offset:{c*32*p + t*32}")
            rtok[n] = A.lg(f"ds_read_b64_tr_b16 {v(b+2,2)}, v{V_TR} offset:{(c*32+16)*p + t*32}")

        Q = []
        VQ = []
        class Rec:
            def __init__(s_, dl): s_.dl = dl
            def __call__(s_, t):
                if opt.get("no_valu") and t.startswith("v_") and s_.dl in (2, 3, 5, PUB_STAGE): return
                if t == "gap":
                    Q.append((lambda: None, s_.dl, 1)); return
                cost = 2 if t.startswith(("v_exp", "v_rcp", "v_rsq")) else (1 if t.startswith("v_") else 0.5)
                Q.append((lambda: A(t), s_.dl, cost))
            def grp(s_, fn, cost=1): Q.append((fn, s_.dl, cost))
            def vm(s_, nm, t): Q.append((lambda: ev.__setitem__(nm, A.vm(t)), s_.dl, 2))
            def lg(s_, nm, t): Q.append((lambda: ev.__setitem__(nm, A.lg(t)), s_.dl, 0.5))
            def wait_vm(s_, nm): Q.append((lambda: A.wait_vm(ev.get(nm)), s_.dl, 0.5))
            def wait_lg(s_, nm): Q.append((lambda: A.wait_lg(ev.get(nm)), s_.dl, 0.5))
        def flush(dl):
            idx = [q for q, it in enumerate(Q) if it[1] <= dl]
            if idx:
                for _ in range(idx[-1] + 1): Q.pop(0)[0]()
        carry = [0.0]
        def run_fillers(slot):
            if not Q: carry[0] = 0.0; return
            rate_ = BASE
            cum = 0.0; seen = {}
            for _, dl, cost in Q:
                cum += cost; seen[dl] = cum
            for dl, c_ in seen.items():
                left = first_slot[min(dl, 27)] - slot
                if left > 0 and dl <= 27: rate_ = max(rate_, c_ / left)
            carry[0] += rate_
            while Q and carry[0] >= Q[0][2] - 1e-9:
                fn, _, cost = Q.pop(0); fn(); carry[0] -= cost

        def gelu_group(R, P, rt, first):
            X = [T + r for r in range(4)]; U = [T + 4 + r for r in range(4)]
            R(f"v_lshlrev_b32 v{X[0]}, 16, v{P}")
            R(f"v_and_b32 v{X[1]}, s62, v{P}")
            R(f"v_lshlrev_b32 v{X[2]}, 16, v{P+1}")
            R(f"v_and_b32 v{X[3]}, s62, v{P+1}")
            for r in range(4): R(f"v_mul_f32 v{U[r]}, v{X[r]}, v{X[r]}")
            for r in range(4): R(f"v_fmamk_f32 v{U[r]}, v{U[r]}, {f32(C2)}, v{V_C1}")
            for r in range(4): R(f"v_mul_f32 v{U[r]}, v{U[r]}, v{X[r]}")
            for r in range(4): R(f"v_exp_f32 v{U[r]}, v{U[r]}")
            for r in range(4): R(f"v_add_f32 v{U[r]}, 1.0, v{U[r]}")
            for r in range(4): R(f"v_rcp_f32 v{U[r]}, v{U[r]}")
            for r in range(4): R(f"v_mul_f32 v{X[r]}, v{X[r]}, v{U[r]}")
            R(f"v_cvt_pk_bf16_f32 v{P}, v{X[0]}, v{X[1]}")
            R(f"v_cvt_pk_bf16_f32 v{P+1}, v{X[2]}, v{X[3]}")
            sm, sq = V_ST + 2 * rt, V_ST + 2 * rt + 1
            R(f"v_add_f32 v{U[0]}, v{X[0]}, v{X[1]}")
            R(f"v_mul_f32 v{U[2]}, v{X[0]}, v{X[0]}")
            R(f"v_add_f32 v{U[1]}, v{X[2]}, v{X[3]}")
            R(f"v_mul_f32 v{U[3]}, v{X[2]}, v{X[2]}")
            R(f"v_fmac_f32 v{U[2]}, v{X[1]}, v{X[1]}")
            R(f"v_fmac_f32 v{U[3]}, v{X[3]}, v{X[3]}")
            if first:
                R(f"v_add_f32 v{sm}, v{U[0]}, v{U[1]}")
                R(f"v_add_f32 v{sq}, v{U[2]}, v{U[3]}")
            else:
                R(f"v_add3_f32_dummy") if False else None
                R(f"v_add_f32 v{U[0]}, v{U[0]}, v{U[1]}")
                R(f"v_add_f32 v{U[2]}, v{U[2]}, v{U[3]}")
                R(f"v_add_f32 v{sm}, v{sm}, v{U[0]}")
                R(f"v_add_f32 v{sq}, v{sq}, v{U[2]}")

        def stats_to_lds(R):
            R(f"v_and_b32 v{T}, 15, v0")
            R("s_lshl_b32 s63, s51, 5")
            R(f"v_add_u32 v{T}, s63, v{T}")
            R(f"v_lshlrev_b32 v{T}, 6, v{T}")
            R(f"v_lshrrev_b32 v{T+1}, 4, v0")
            R(f"v_lshl_add_u32 v{T}, v{T+1}, 3, v{T}")
            R(f"v_add_u32 v{T}, {SA + j*32}, v{T}")
            R.lg("stl", f"ds_write_b64 v{T}, {v(V_ST,2)}")
            R.lg("stl", f"ds_write_b64 v{T}, {v(V_ST+2,2)} offset:1024")
        def stats_publish(R):
            R(f"v_and_b32 v{V_ST+2}, 31, v0")
            R("s_lshl_b32 s63, s51, 5")
            R(f"v_add_u32 v{V_ST+2}, s63, v{V_ST+2}")
            R(f"v_lshlrev_b32 v{V_ST+3}, 6, v{V_ST+2}")
            R(f"v_add_u32 v{V_ST+3}, {SA}, v{V_ST+3}")
            P2 = ACC + 32
            R.lg("p0", f"ds_read_b128 {v(T,4)}, v{V_ST+3}")
            R.lg("p0", f"ds_read_b128 {v(T+4,4)}, v{V_ST+3} offset:16")
            R.lg("p1", f"ds_read_b128 {v(P2,4)}, v{V_ST+3} offset:32")
            R.lg("p1", f"ds_read_b128 {v(P2+4,4)}, v{V_ST+3} offset:48")
            R(f"v_lshlrev_b32 v{V_ST+2}, 4, v{V_ST+2}")
            R("s_lshl_b32 s63, s48, 4")
            R("s_add_u32 s63, s63, s49")
            R("s_lshl_b32 s63, s63, 11")
            R("gap"); R("gap"); R("gap")
            R.wait_lg("p1")
            for e in range(4):
                R(f"v_add_f32 v{T+e}, v{T+e}, v{T+4+e}")
                R(f"v_add_f32 v{P2+e}, v{P2+e}, v{P2+4+e}")
            for e in range(4):
                R(f"v_add_f32 v{T+e}, v{T+e}, v{P2+e}")
            R(f"v_add_f32 v{T}, v{T}, v{T+2}")
            R(f"v_add_f32 v{T+2}, v{T+1}, v{T+3}")
            R(f"v_mov_b32 v{T+1}, s71")
            R(f"v_mov_b32 v{T+3}, s71")
            def g():
                A("s_mov_b32 exec_hi, 0")
                ev["pub"] = A.vm(f"buffer_store_dwordx4 {v(T,4)}, v{V_ST+2}, s[36:39], s63 offen sc1")
                A("s_mov_b64 exec, -1")
            R.grp(g, 2)
        SP = ACC + 32 if j == 0 else PB + 12
        PR = [T, T + 4, SP, SP + 4]
        LA = V_D0 + 2
        def part_strs():
            return [f"buffer_load_dwordx4 {v(PR[e],4)}, v{V_ST+2}, s[36:39], {'s64' if e < 2 else 's65'} offen offset:{(e&1)*2048 + j*256} sc1" for e in range(4)]
        def part_issue(R):
            R(f"v_lshrrev_b32 v{V_ST+2}, 4, v0")
            R(f"v_lshlrev_b32 v{V_ST+2}, 13, v{V_ST+2}")
            R(f"v_and_b32 v{V_ST+3}, 15, v0")
            R(f"v_lshl_add_u32 v{V_ST+2}, v{V_ST+3}, 4, v{V_ST+2}")
            R("s_lshl_b32 s64, s48, 15")
            R("s_lshl_b32 s65, s51, 9")
            R("s_add_u32 s64, s64, s65")
            R("s_add_u32 s65, s64, 4096")
            for s_ in part_strs(): R.vm("part", s_)
        def tag_strs():
            o = [f"v_xor_b32 v{V_ST}, s71, v{PR[0]+1}", f"v_xor_b32 v{V_ST+1}, s71, v{PR[0]+3}"]
            for k in range(1, 4):
                o += [f"v_xor_b32 v{V_ST+3}, s71, v{PR[k]+1}", f"v_or_b32 v{V_ST}, v{V_ST}, v{V_ST+3}",
                      f"v_xor_b32 v{V_ST+3}, s71, v{PR[k]+3}", f"v_or_b32 v{V_ST+1}, v{V_ST+1}, v{V_ST+3}"]
            o += [f"v_or_b32 v{V_ST}, v{V_ST}, v{V_ST+1}"]
            return o
        mine, other = V_ST + 2 * j, V_ST + 2 * (1 - j)
        def stats_final(R):
            R.wait_vm("part")
            for s_ in tag_strs(): R(s_)
            def chk():
                A(f"v_cmp_ne_u32 vcc, 0, v{V_ST}")
                A("s_nop 4")
                A(f"s_cbranch_vccz {L(f'pok{j}')}")
                A("s_mov_b32 s63, 0")
                A.label(L(f"pspin{j}"))
                A("s_sleep 8")
                for s_ in part_strs(): A(s_)
                A("s_add_u32 s63, s63, 1")
                A(f"s_cmp_gt_u32 s63, {SPIN}")
                A(f"s_cbranch_scc1 {L(f'pok{j}')}")
                A("s_waitcnt vmcnt(0)")
                for s_ in tag_strs(): A(s_)
                A(f"v_cmp_ne_u32 vcc, 0, v{V_ST}")
                A("s_nop 4")
                A(f"s_cbranch_vccnz {L(f'pspin{j}')}")
                A.label(L(f"pok{j}"))
            R.grp(chk, 2)
            for c_ in range(2):
                q0, q1, q2, q3 = [PR[e] + 2 * c_ for e in range(4)]
                R(f"v_add_f32 v{q0}, v{q0}, v{q1}")
                R(f"v_add_f32 v{q2}, v{q2}, v{q3}")
            for c_ in range(2):
                R(f"v_add_f32 v{mine + c_}, v{PR[0] + 2*c_}, v{PR[2] + 2*c_}")
            R(f"v_and_b32 v{LA}, 15, v0")
            R("s_lshl_b32 s63, s51, 8")
            R(f"s_add_u32 s63, s63, {SB}")
            R(f"v_lshlrev_b32 v{LA}, 3, v{LA}")
            R(f"v_add_u32 v{LA}, s63, v{LA}")
            for sw in ("v_permlane32_swap_b32", "v_permlane16_swap_b32"):
                for r in range(2): R(f"v_mov_b32 v{PR[0]+r}, v{mine+r}")
                R("gap")
                for r in range(2): R(f"{sw} v{mine+r}, v{PR[0]+r}")
                for r in range(2): R(f"v_add_f32 v{mine+r}, v{mine+r}, v{PR[0]+r}")
            m, q = mine, mine + 1
            for s_ in (f"v_mul_f32 v{m}, {f32(1.0/FH)}, v{m}", f"v_mul_f32 v{q}, {f32(1.0/FH)}, v{q}",
                       f"v_fma_f32 v{q}, -v{m}, v{m}, v{q}", f"v_max_f32 v{q}, 0, v{q}", f"v_add_f32 v{q}, {f32(1e-5)}, v{q}",
                       f"v_rsq_f32 v{q}, v{q}", "gap", f"v_mul_f32 v{m}, -v{m}, v{q}"):
                R(s_)
            R.lg("sb", f"ds_write_b64 v{LA}, {v(mine,2)} offset:{j*128}")
        def stats_other(R):
            R.lg("so", f"ds_read_b64 {v(other,2)}, v{LA} offset:{(1-j)*128}")
            R("gap"); R("gap"); R("gap"); R("gap")
            R.wait_lg("so")
            for a_, tt in enumerate(tiles[0]):
                norm_tile(R, PA + a_ * 4, tt, SP + (a_ % 2) * 4)
        def st_addr(R):
            R(f"v_bfe_u32 v{V_D0+1}, v0, 4, 1")
            R(f"v_lshlrev_b32 v{V_D0+1}, 2, v{V_D0+1}")
            R(f"v_xor_b32 v{V_D0}, v0, v{V_D0+1}")
            R(f"v_lshlrev_b32 v{V_D0}, 4, v{V_D0}")
            R(f"v_lshlrev_b32 v{V_D0+1}, 4, v0")
            R("s_lshl_b32 s66, s49, 6")
            R("s_lshl_b32 s63, s48, 2")
            R("s_add_u32 s66, s66, s63")
            R("s_add_u32 s66, s66, s51")
            R("s_mul_i32 s66, s66, 9216")
            R("s_lshl_b32 s69, s48, 4")
            R("s_add_u32 s69, s69, s49")
            R("s_lshl_b32 s69, s69, 2")
            R("s_add_u32 s69, s69, s51")
            R("s_mul_i32 s69, s69, 9216")
            R("s_mov_b32 s14, 0")
            R("s_mov_b32 s15, -1")
        def qkv_addr(R):
            R(f"v_lshlrev_b32 v{V_SE}, 4, v0")
            R("s_lshl_b32 s70, s48, 2")
            R("s_add_u32 s70, s70, s51")
            R("s_mul_i32 s70, s70, 110592")
            R("s_lshl_b32 s63, s67, 5")
            R("s_add_u32 s70, s70, s63")
            R(f"v_add_u32 v{V_SE}, s70, v{V_SE}")
            R(f"v_add_u32 v{V_SO}, 4096, v{V_SE}")
        def norm_tile(R, P, t, O):
            for rt in range(2):
                m, q = V_ST + 2 * rt, V_ST + 2 * rt + 1
                X = [T + 4 * rt + r for r in range(4)]
                R(f"v_lshlrev_b32 v{X[0]}, 16, v{P+2*rt}")
                R(f"v_and_b32 v{X[1]}, s62, v{P+2*rt}")
                R(f"v_lshlrev_b32 v{X[2]}, 16, v{P+2*rt+1}")
                R(f"v_and_b32 v{X[3]}, s62, v{P+2*rt+1}")
                for r in range(4): R(f"v_fma_f32 v{X[r]}, v{X[r]}, v{q}, v{m}")
                R(f"v_cvt_pk_bf16_f32 v{P+2*rt}, v{X[0]}, v{X[1]}")
                R(f"v_cvt_pk_bf16_f32 v{P+2*rt+1}, v{X[2]}, v{X[3]}")
            R(f"v_cndmask_b32 v{O}, v{P}, v{P+2}, s[14:15]")
            R(f"v_cndmask_b32 v{O+1}, v{P+1}, v{P+3}, s[14:15]")
            R(f"v_cndmask_b32 v{O+2}, v{P+2}, v{P}, s[14:15]")
            R(f"v_cndmask_b32 v{O+3}, v{P+3}, v{P+1}, s[14:15]")
            R(f"s_add_u32 s63, s66, {t*1024}")
            R.vm("zst", f"buffer_store_dwordx4 {v(O,4)}, v{V_D0}, s[24:27], s63 offen {WTL}")
        NB_ = PB + 12
        def nonce_load(R):
            def g():
                A("s_cmp_eq_u32 s50, 0")
                A(f"s_cbranch_scc0 {L('nl')}")
                ev["nonce"] = A.vm_opt(f"buffer_load_dword v{NB_}, off, s[40:43], s3 sc1")
                A.label(L("nl"))
            if j == 0: R.grp(g, 2)
        def nonce_write(R):
            if j == 1: return
            R.wait_vm("nonce")
            def g():
                A("s_cmp_eq_u32 s50, 0")
                A(f"s_cbranch_scc0 {L('nok')}")
                A("s_mov_b32 s64, 0")
                A.label(L("nspin"))
                A(f"v_readfirstlane_b32 s63, v{NB_}")
                A("s_add_u32 s64, s64, 1")
                A(f"s_cmp_gt_u32 s64, {SPIN}")
                A(f"s_cbranch_scc1 {L('nw')}")
                A("s_cmp_lg_u32 s63, 0")
                A(f"s_cbranch_scc1 {L('nw')}")
                A("s_sleep 8")
                A(f"buffer_load_dword v{NB_}, off, s[40:43], s3 sc1")
                A("s_waitcnt vmcnt(0)")
                A(f"s_branch {L('nspin')}")
                A.label(L("nw"))
                A(f"v_mov_b32 v{NB_+1}, {NA}")
                A(f"ds_write_b32 v{NB_+1}, v{NB_}")
                A("s_waitcnt lgkmcnt(0)")
                A.label(L("nok"))
            R.grp(g, 3)
        def nonce_read(R):
            R(f"v_mov_b32 v{NB_+1}, {NA}")
            R.lg("nr", f"ds_read_b32 v{NB_}, v{NB_+1}")
            R("gap"); R("gap"); R("gap")
            R.wait_lg("nr")
            R(f"v_readfirstlane_b32 s71, v{NB_}")
        PFD = PB + 8
        def wsp_pf_setup(R):
            for s_ in ("s_mov_b32 s76, s10", "s_mov_b32 s77, s11", f"s_mov_b32 s78, {S*S*2}", "s_mov_b32 s79, 0x00020000",
                       "s_lshl_b32 s68, s2, 3", "s_add_u32 s68, s68, s50", "s_lshl_b32 s68, s68, 12"):
                R(s_)
            R(f"v_lshlrev_b32 v{NB_+2}, 4, v0")
        def wsp_pf_item(p):
            def g():
                ev["pf"] = A.vm(f"buffer_load_dwordx4 {v(PFD,4)}, v{NB_+2}, s[76:79], s68 offen offset:{p*1024}")
            return g
        def repack_issue(R, slot):
            def g():
                for s_ in ("s_lshl_b32 s4, s2, 2", "s_add_u32 s4, s4, s51", "s_lshr_b32 s68, s4, 3", "s_and_b32 s59, s4, 7",
                           "s_sub_u32 s4, s68, 18", "s_lshr_b32 s12, s4, 3", "s_and_b32 s13, s4, 7",
                           "s_mul_i32 s12, s12, 288", "s_lshl_b32 s9, s13, 5", "s_add_u32 s12, s12, s9",
                           "s_mul_i32 s4, s4, 288", f"s_sub_u32 s4, s4, {64*288 - 128}",
                           "s_cmp_ge_u32 s13, 4", "s_cselect_b32 s9, 16, 0", "s_add_u32 s12, s12, s9",
                           "s_cmp_ge_u32 s68, 82", "s_cselect_b32 s4, s4, s12", "s_cselect_b32 s5, 144, 16",
                           "s_mov_b32 s6, 8", "s_mov_b32 s7, 4", "s_mov_b32 s8, 2"):
                    A(s_)
            R.grp(g, 8)
            def g1():
                for s_ in ("s_lshr_b32 s9, s68, 1", "s_mul_i32 s9, s9, 72", "s_and_b32 s12, s68, 1", "s_lshl_b32 s12, s12, 3", "s_add_u32 s9, s9, s12",
                           "s_cmp_lt_u32 s68, 16", "s_cselect_b32 s4, s9, s4", "s_cselect_b32 s5, 4, s5", "s_cselect_b32 s6, 36, s6", "s_cselect_b32 s7, 18, s7",
                           "s_mul_i32 s9, s68, 288", f"s_sub_u32 s9, s9, {16*288 - 16}", "s_and_b32 s12, s68, 0xfffffffe",
                           "s_cmp_eq_u32 s12, 16", "s_cselect_b32 s4, s9, s4", "s_cselect_b32 s5, 36, s5", "s_cselect_b32 s6, 144, s6",
                           "s_cselect_b32 s7, 72, s7", "s_cselect_b32 s8, 18, s8"):
                    A(s_)
            R.grp(g1, 8)
            def g2_():
                for s_ in (f"s_mov_b32 s78, {D*D*2}", "s_mov_b32 s79, 0x00020000", "s_cmp_lt_u32 s68, 18", "s_cselect_b32 s76, s72, s74",
                           "s_cselect_b32 s77, s73, s75", f"s_cselect_b32 s78, s78, {FH*D*2}", "s_mul_i32 s4, s4, 1152", "s_mul_i32 s9, s59, 144",
                           "s_add_u32 s4, s4, s9", "s_mul_i32 s9, s51, 4608", f"s_add_u32 s9, s9, {slot*SLOT}"):
                    A(s_)
            R.grp(g2_, 5)
            t0, t1, t2, t3, t4 = PB, PB + 1, PB + 2, PB + 3, V_C1
            for s_ in (f"v_mul_u32_u24 v{t0}, 7282, v0", f"v_lshrrev_b32 v{t0}, 16, v{t0}", f"v_mul_u32_u24 v{t1}, 9, v{t0}",
                       f"v_sub_u32 v{t1}, v0, v{t1}", f"v_lshlrev_b32 v{t1}, 4, v{t1}"):
                R(s_)
            for p in range(5):
                R(f"v_add_u32 v{t2}, {7*p}, v{t0}")
                R(f"v_and_b32 v{t3}, 1, v{t2}")
                for bit, co in ((1, "s8"), (2, "s7"), (3, "s6"), (4, "s5")):
                    R(f"v_bfe_u32 v{t4}, v{t2}, {bit}, 1")
                    R(f"v_mad_u32_u24 v{t3}, v{t4}, {co}, v{t3}")
                R(f"v_mul_u32_u24 v{t3}, 1152, v{t3}")
                R(f"v_add_u32 v{t3}, v{t3}, v{t1}")
                def g2(p=p):
                    A(f"s_add_u32 m0, s9, {p*1008}")
                    A("s_mov_b32 exec_hi, " + ("0xf" if p == 4 else "0x7fffffff"))
                    ev["rp"] = A.vm(f"buffer_load_dwordx4 v{t3}, s[76:79], s4 offen lds")
                    A("s_mov_b64 exec, -1")
                R.grp(g2, 2)
        def repack_finish(R):
            a0, a1, a2, a3 = T + 4, T + 5, T + 6, T + 7
            RR = [PB + 4, T, PB + 4, T, PB + 4]
            for s_ in (f"v_lshrrev_b32 v{a0}, 2, v0", f"v_mul_u32_u24 v{a0}, 144, v{a0}", f"v_and_b32 v{a1}, 3, v0",
                       f"v_lshl_add_u32 v{a0}, v{a1}, 3, v{a0}", f"v_add_u32 v{a0}, s9, v{a0}",
                       f"v_lshlrev_b32 v{a1}, 4, v0",
                       f"v_lshrrev_b32 v{a2}, 4, v0", f"v_lshlrev_b32 v{a2}, 7, v{a2}", f"v_and_b32 v{a3}, 7, v0",
                       f"v_lshl_add_u32 v{a2}, v{a3}, 4, v{a2}", f"v_and_b32 v{a3}, 8, v0", f"v_lshl_add_u32 v{a2}, v{a3}, 24, v{a2}",
                       f"v_add_u32 v{a2}, 4096, v{a2}"):
                R(s_)
            def g():
                A(f"s_add_u32 s76, s46, {WS_WP}")
                A("s_addc_u32 s77, s47, 0")
                A(f"s_mov_b32 s78, {SZ_WP}")
                A("s_mul_i32 s4, s59, 90")
                A("s_add_u32 s4, s4, s68")
                A("s_mul_i32 s4, s4, 4608")
                A("s_cmp_lt_u32 s68, 90")
                A(f"s_cselect_b32 s4, s4, {SZ_WP}")
            R.wait_vm("rp")
            R.grp(g, 4)
            for grp in ((0, 1), (2, 3), (4,)):
                for dt in grp:
                    R.lg("rr", f"ds_read_b64_tr_b16 {v(RR[dt],2)}, v{a0} offset:{dt*32}")
                    R.lg("rr", f"ds_read_b64_tr_b16 {v(RR[dt]+2,2)}, v{a0} offset:{2304+dt*32}")
                for _ in range(5): R("gap")
                R.wait_lg("rr")
                for dt in grp:
                    if dt < 4: R.vm("rs", f"buffer_store_dwordx4 {v(RR[dt],4)}, v{a1}, s[76:79], s4 offen offset:{dt*1024} {WT}")
                    else: R.vm("rs", f"buffer_store_dwordx4 {v(RR[dt],4)}, v{a2}, s[76:79], s4 offen {WT}")
        def front(fn, dl):
            rest = Q[:]; del Q[:]
            fn(Rec(dl)); Q.extend(rest)

        cvt_pending = {}
        def cvt_slot(job, a_):
            out = []
            for rt in range(2):
                P = pend[job] + (a_ * 2 + rt) * 2
                c = acc(a_, rt)
                out.append(f"v_cvt_pk_bf16_f32 v{P}, v{c}, v{c+1}")
                out.append(f"v_cvt_pk_bf16_f32 v{P+1}, v{c+2}, v{c+3}")
            return out
        def xread_items(R, rnd):
            for c in range(6):
                for rt in range(2):
                    R.lg(f"xr{rnd}", f"ds_read_b128 {v(AX+(rt*18+rnd*6+c)*4,4)}, v14 offset:{rt*16*XP + c*64}")

        BASE = opt.get("base", 2.0)
        R = Rec(2)
        for n in range(6, 12):
            for s_ in norm_ins(n): R(s_)
            R.grp(lambda n=n: ev.__setitem__("xw1", xwrite(A, n)), 2)
        for _ in range(6): R("gap")
        DIST = 3
        free_slots = []; next_stage = NI
        for n in range(DIST):
            issue_read(n)
        RP_STAGE = opt.get('rp', 23)
        RPF_STAGE = opt.get('rpf', 26)
        qst = []
        for n, (job, st, c, ai, t) in enumerate(FR):
            k = (st % 9) * 2 + c
            if st != state["mstage"]:
                flush(st)
                while VQ: VQ.pop(0)()
                for nm, at in (("xw1", 2), ("xr1", 3), ("xw2", 5), ("xr2", 6), ("stl", PUB_STAGE), ("sb", FIN_STAGE + 1)):
                    if st == at: A.wait_lg(ev.get(nm))
                if st + 1 in dma_tok: A.wait_vm(dma_tok[st + 1])
                if MEGA and st == ZF_STAGE: A.wait_vm(ev["zst"])
                A("s_barrier")
                state["mstage"] = st
                if KST and st in (9, 18):
                    stamp(A, 82 + (st // 9) * 2); A.nlg += 2; A.drain_lg()
                if opt.get("trace") and st in TRS:
                    A(("s_memrealtime" if opt.get("rt") else "s_memtime") + " s[100:101]"); A.nlg += 2; A.drain_lg()
                    A(f"s_mov_b32 s{TRR[TRS.index(st)]}, s100")
                free_slots.append(slot_of[st - 1])
                if st == 6: free_slots.append(6)
                if st == 7: free_slots.append(7)
                while free_slots and next_stage < 27:
                    VQ += dma_items(A, next_stage, free_slots.pop(0), j); next_stage += 1
                if qst and st in opt.get("qss", [[19, 22, 25, 26], [22, 25, 26]])[j]: VQ.append(qst.pop(0))
                if st == 2:
                    xread_items(Rec(3), 1)
                    for n_ in (12, 13):
                        for s_ in norm_ins(n_): Rec(3)(s_)
                if st == 3:
                    for n_ in range(12, 18):
                        if n_ >= 14:
                            for s_ in norm_ins(n_): Rec(5)(s_)
                        Rec(5).grp(lambda n_=n_: ev.__setitem__("xw2", xwrite(A, n_)), 2)
                    for _ in range(6): Rec(5)("gap")
                if st == 5: xread_items(Rec(6), 2); nonce_load(Rec(6))
                if st == 7: wsp_pf_setup(Rec(9))
                PFS = opt.get("pfs", [[10, 11, 13, 14], [9, 11, 12, 14]])[j]
                if st in PFS and not opt.get("no_pf"): VQ.append(wsp_pf_item(PFS.index(st)))
                if st == 18: A.wait_vm(ev.get("pf"))
                if st == 7: nonce_write(Rec(8))
                if st == 8: nonce_read(Rec(9))
                if st == PUB_STAGE and j == 0: stats_publish(Rec(PUB_STAGE + 1))
                if st == POLL_STAGE: front(part_issue, POLL_STAGE + 1)
                if st == max(POLL_STAGE, 19) + 1: front(st_addr, FIN_STAGE + 1)
                if st == FIN_STAGE: front(stats_final, FIN_STAGE + 1)
                if st == FIN_STAGE + 1: front(stats_other, NRM_STAGE)
                if st == RP_STAGE and j == 1 and not opt.get('no_rp'): repack_issue(Rec(RPF_STAGE - 1), free_slots.pop(0))
                if st == RPF_STAGE and j == 1 and not opt.get('no_rp'): repack_finish(Rec(28))
                if MEGA and st == ZF_STAGE and j == 0: opt["zflag"](A, L)
                if st % 9 == 0:
                    pj = job - 1
                    for a_ in range(len(tiles[pj])):
                        cvt_pending[a_] = cvt_slot(pj, a_)
                    extra = [a_ for a_ in cvt_pending if a_ >= len(tiles[job])]
                    for a_ in extra:
                        for s_ in cvt_pending.pop(a_): A(s_)
                    state["queue"] = pj
                state["vq_next"] = 2 * n + (1 if j == 0 else 3)
            if n + DIST < len(FR):
                issue_read(n + DIST)
            if ai in cvt_pending:
                for s_ in cvt_pending.pop(ai): A(s_)
            A.wait_lg(rtok[n])
            b = BF[n % 4]
            for rt in range(2):
                cc = "0" if k == 0 else v(acc(ai, rt), 4)
                if not opt.get("no_mfma"):
                    A(f"v_mfma_f32_16x16x32_bf16 {v(acc(ai,rt),4)}, {v(b,4)}, {v(AX+(rt*18+k)*4,4)}, {cc}")
                slot = 2 * n + rt
                if VQ and slot >= state.get("vq_next", 0):
                    VQ.pop(0)()
                    left = first_slot[st + 1] - slot - 1
                    state["vq_next"] = slot + max(1, min(4, left // (len(VQ) + 1)))
                run_fillers(slot)
            if state.get("queue") is not None and not cvt_pending:
                pj = state.pop("queue")
                if pj == 0:
                    R = Rec(PUB_STAGE)
                    for a_, tt in enumerate(tiles[pj]):
                        for rt in range(2):
                            gelu_group(R, PA + (a_ * 2 + rt) * 2, rt, a_ == 0)
                    stats_to_lds(R)
                else:
                    R = Rec(19)
                    qkv_addr(R)
                    for a_, tt in enumerate(tiles[pj]):
                        P = PB + 4 * a_
                        R(f"v_permlane16_swap_b32 v{P}, v{P+2}")
                        R(f"v_permlane16_swap_b32 v{P+1}, v{P+3}")
                        qst.append(lambda P=P, tt=tt: A.vm(f"buffer_store_dwordx4 {v(P,4)}, v{V_SE if tt < 4 else V_SO}, s[32:35], 0 offen offset:{(tt%4)*1024} {WT}"))
        if st_ is not None: stamp(A, 88); A.nlg += 2
        if MEGA:
            MEGA(j, A, dict(acc=acc, tiles=tiles, flush=flush, L=L))
            return A.text()
        for a_, tt in enumerate(tiles[2]):
            c = acc(a_, 0)
            A(f"v_cvt_pk_bf16_f32 v{c}, v{c}, v{c+1}")
            A(f"v_cvt_pk_bf16_f32 v{c+1}, v{c+2}, v{c+3}")
            A(f"v_cvt_pk_bf16_f32 v{c+2}, v{c+4}, v{c+5}")
            A(f"v_cvt_pk_bf16_f32 v{c+3}, v{c+6}, v{c+7}")
            A(f"s_add_u32 s64, s69, {tt*1024}")
            A.vm(f"buffer_store_dwordx4 {v(c,4)}, v{V_D0+1}, s[28:31], s64 offen {WTL}")
        flush(99)
        if opt.get("trace"):
            A(("s_memrealtime" if opt.get("rt") else "s_memtime") + " s[100:101]")
            A("s_waitcnt vmcnt(0) lgkmcnt(0)")
            srd(A, 92, 46, 1 << 20, WS_DIAG + (1 << 20))
            A("s_lshl_b32 s63, s2, 3")
            A("s_add_u32 s63, s63, s50")
            A("s_lshl_b32 s63, s63, 6")
            A("v_mov_b32 v12, s63")
            for q_, r_ in enumerate(TRR + [100]):
                A(f"v_mov_b32 v13, s{r_}")
                A(f"buffer_store_dword v13, v12, s[92:95], 0 offen offset:{q_*4}")
            A("s_waitcnt vmcnt(0)")
        if st_ is not None and j == opt.get("stampj", 1):
            A(f"s_cmp_eq_u32 s50, {4*j}")
            A(f"s_cbranch_scc0 {L('end')}")
            stamp_store(A, 46, st_, [80, 96, 98, 82, 84, 86, 88, 90], 92, vtmp=12)
        A("s_endpgm")
        return A.text()

    saved = dict(dma_tok); saved_slots = dict(slot_of)
    text += program(0)
    text += L("j1") + ":\n"
    dma_tok.clear(); dma_tok.update(saved); slot_of.clear(); slot_of.update(saved_slots)
    text += program(1)
    text += L("end") + ":\n    s_endpgm\n"
    return text, kernel_desc(name, 256, 102), f"; @launch kernel={name} grid=(256,1,1) block=(512,1,1) lds=163840"
```

```python
from asmlib import *
from layout import *
from k1 import f32, C1, C2

SLOT = 34816
NST = 32
KV = 4 * SLOT
KVSZ = 12288

def gen_k3(name="k3_kernel", opt=None):
    opt = opt or {}
    st_ = opt.get("stamp", None)
    WT = opt.get("wt", "")
    A = Asm()
    kernel_header(A, name)
    L = lambda s_: f"{name}_{s_}"
    A(f"s_cmp_ge_u32 s2, 256")
    A(f"s_cbranch_scc1 {L('end')}")
    if st_ is not None: stamp(A, 50)
    A("s_load_dwordx4 s[4:7], s[0:1], 40")
    A("s_load_dwordx2 s[8:9], s[0:1], 80")
    A("s_and_b32 s35, s2, 7")
    A("s_lshr_b32 s36, s2, 3")
    A("s_lshr_b32 s32, s35, 2")
    A("s_lshl_b32 s32, s32, 3")
    A("s_lshr_b32 s37, s36, 2")
    A("s_add_u32 s32, s32, s37")
    A("s_and_b32 s33, s35, 3")
    A("s_lshl_b32 s33, s33, 2")
    A("s_and_b32 s37, s36, 3")
    A("s_add_u32 s33, s33, s37")
    A("v_lshrrev_b32 v1, 6, v0")
    A("v_and_b32 v0, 63, v0")
    A("v_readfirstlane_b32 s34, v1")
    A("s_nop 3")
    A("s_cmp_ge_u32 s34, 4")
    A(f"s_cbranch_scc1 {L('loader')}")

    ACC = 112
    WF = [8, 24]
    ZF = [40, 76]
    acc = lambda a_, f: ACC + (a_ * 9 + f) * 4
    if opt.get("prio", 0) == 1: A("s_setprio 2")
    A("s_and_b32 s38, s34, 1")
    A("s_lshr_b32 s39, s34, 1")
    A("v_and_b32 v1, 15, v0")
    A("s_lshl_b32 s40, s32, 7")
    A("s_lshl_b32 s41, s38, 6")
    A("s_add_u32 s40, s40, s41")
    A("v_add_u32 v7, s40, v1")
    A("v_lshlrev_b32 v7, 1, v7")
    A("v_lshrrev_b32 v3, 4, v0")
    A("s_lshl_b32 s41, s39, 2")
    A("v_add_u32 v3, s41, v3")
    A("v_and_b32 v4, 7, v0")
    A("v_xor_b32 v3, v3, v4")
    A("v_lshlrev_b32 v3, 4, v3")
    A("v_lshlrev_b32 v4, 7, v1")
    A("v_add_u32 v3, v3, v4")
    A("s_lshl_b32 s41, s38, 13")
    A("v_add_u32 v1, s41, v3")
    A(f"v_add_u32 v2, {2*SLOT}, v1")
    A("s_mul_i32 s41, s39, 9216")
    A("s_add_u32 s41, s41, 16384")
    A("v_and_b32 v8, 3, v0")
    A("v_lshlrev_b32 v3, 8, v8")
    A("v_bfe_u32 v9, v0, 4, 1")
    A("v_lshl_add_u32 v3, v9, 7, v3")
    A("v_bfe_u32 v9, v0, 2, 2")
    A("v_lshl_add_u32 v3, v9, 4, v3")
    A("v_and_b32 v9, 1, v0")
    A("v_lshl_add_u32 v3, v9, 6, v3")
    A("v_lshrrev_b32 v9, 5, v0")
    A("v_lshrrev_b32 v8, 1, v8")
    A("v_xor_b32 v9, v9, v8")
    A("v_lshl_add_u32 v3, v9, 3, v3")
    A("v_add_u32 v3, s41, v3")
    A(f"v_add_u32 v4, {2*SLOT}, v3")
    A("s_waitcnt lgkmcnt(0)")
    srd(A, 24, 8, SZ_YC, WS_YC)
    srd(A, 28, 6, S * 2)
    A("s_lshl_b32 s41, s39, 6")
    A("buffer_load_ushort v5, v7, s[28:31], s41 offen")
    A("buffer_load_ushort v6, v7, s[28:31], s41 offen offset:32")
    A("v_xor_b32 v7, 64, v3")
    A("v_xor_b32 v0, 64, v4")

    def reads(st, slot):
        out = []
        wa = "v1" if slot < 2 else "v2"
        za = "v3" if slot < 2 else "v4"
        zb = "v7" if slot < 2 else "v0"
        so = (slot & 1) * SLOT
        def z(f):
            out.append(f"ds_read_b64_tr_b16 {v(ZF[st]+4*f,2)}, {za} offset:{so + f*1024}")
            out.append(f"ds_read_b64_tr_b16 {v(ZF[st]+4*f+2,2)}, {zb} offset:{so + f*1024}")
        z(0)
        for a_ in range(4):
            out.append(f"ds_read_b128 {v(WF[st]+4*a_,4)}, {wa} offset:{so + a_*2048}")
        for f in range(1, 9):
            z(f)
        return out
    def body(u, first=False, cmp=None):
        st = u & 1
        rd = reads(st ^ 1, (u + 1) & 3)
        n = 0
        for f in range(9):
            for a_ in range(4):
                cc = "0" if first else v(acc(a_, f), 4)
                A(f"v_mfma_f32_16x16x32_bf16 {v(acc(a_,f),4)}, {v(ZF[st]+4*f,4)}, {v(WF[st]+4*a_,4)}, {cc}")
                if n % 3 != 2 and rd:
                    A(rd.pop(0))
                n += 1
        assert not rd
        if cmp:
            A("s_add_u32 s43, s43, 1")
            A(f"s_cmp_lt_u32 s43, {cmp}")
        A("s_waitcnt lgkmcnt(0)")
        A("s_barrier")

    A("s_barrier")
    for r in reads(0, 0): A(r)
    A("s_waitcnt lgkmcnt(0)")
    A("s_barrier")
    A("s_mov_b32 s43, 0")
    if st_ is not None:
        stamp(A, 52); A("s_memtime s[64:65]")
    body(0, first=True)
    A(f"s_branch {L('c1')}")
    A.raw(".p2align 6")
    A.label(L("cloop"))
    body(0)
    A.label(L("c1"))
    body(1); body(2); body(3, cmp=NST // 4)
    A(f"s_cbranch_scc1 {L('cloop')}")
    if st_ is not None:
        stamp(A, 54); A("s_memtime s[66:67]")

    XB = 40960
    A("v_mbcnt_lo_u32_b32 v0, -1, 0")
    A("v_mbcnt_hi_u32_b32 v0, -1, v0")
    A("s_mul_i32 s41, s34, 18432")
    A(f"s_add_u32 s41, s41, {XB}")
    A("v_lshlrev_b32 v7, 4, v0")
    A("v_add_u32 v8, s41, v7")
    A("s_xor_b32 s42, s34, 2")
    A("s_mul_i32 s42, s42, 18432")
    A(f"s_add_u32 s42, s42, {XB}")
    A("v_add_u32 v9, s42, v7")
    A("s_lshl_b32 s42, s38, 1")
    A("s_add_u32 s42, s42, s39")
    A("s_mul_i32 s42, s42, 9216")
    A("v_add_u32 v1, s42, v7")
    A("s_cmp_eq_u32 s39, 0")
    A(f"s_cbranch_scc0 {L('j1')}")
    for jj in range(2):
        if jj == 1:
            A.label(L("j1"))
        A("s_nop 1")
        keep = [0, 1] if jj == 0 else [2, 3]
        send = [2, 3] if jj == 0 else [0, 1]
        n = 0
        for f in range(9):
            for a_ in send:
                A(f"ds_write_b128 v8, {v(acc(a_,f),4)} offset:{n*1024}")
                n += 1
        Z1 = 76
        for f in range(9):
            A(f"ds_read_b128 {v(Z1+4*f,4)}, v1 offset:{f*1024}")
        A("s_lshl_b32 s46, s32, 3")
        A("s_lshl_b32 s47, s38, 2")
        A("s_add_u32 s46, s46, s47")
        A("s_mul_i32 s46, s46, 90")
        A("s_lshr_b32 s47, s33, 1")
        A("s_mul_i32 s47, s47, 9")
        A("s_add_u32 s46, s46, s47")
        A("s_add_u32 s46, s46, 18")
        A("s_lshl_b32 s46, s46, 10")
        A("s_and_b32 s41, s33, 1")
        A("s_lshl_b32 s44, s41, 12")
        A("s_add_u32 s44, s44, s46")
        A("s_lshl_b32 s45, s41, 3")
        A("s_add_u32 s45, s45, s46")
        A("s_add_u32 s45, s45, 8192")
        A("v_add_u32 v3, s44, v7")
        A("v_add_u32 v4, s45, v7")
        A("s_mov_b32 s48, 0xffff0000")
        A("s_waitcnt vmcnt(0)")
        A("v_lshlrev_b32 v5, 16, v5")
        A("v_lshlrev_b32 v6, 16, v6")
        for f in range(9):
            for ai, a_ in enumerate(keep):
                c = acc(a_, f)
                for r in range(4):
                    A(f"v_add_f32 v{c+r}, v{5+ai}, v{c+r}")
        A("s_waitcnt lgkmcnt(0)")
        A("s_barrier")
        P = acc(send[0], 0)
        for n in range(18):
            A(f"ds_read_b128 {v(P+4*n,4)}, v9 offset:{n*1024}")
        U = 8
        n = 0
        for f in range(9):
            for ai, a_ in enumerate(keep):
                c = acc(a_, f)
                t = U + (n % 2) * 4
                o_ = 16 + ((f // 2) % 2 * 2 + ai) * 4 + (f % 2) * 2
                z = Z1 + 4 * f + 2 * ai
                A(f"v_lshlrev_b32 v{t}, 16, v{z}")
                A(f"v_and_b32 v{t+1}, s48, v{z}")
                A(f"v_lshlrev_b32 v{t+2}, 16, v{z+1}")
                A(f"v_and_b32 v{t+3}, s48, v{z+1}")
                A(f"s_waitcnt lgkmcnt({min(15, 17-n)})")
                for r in range(4):
                    A(f"v_add_f32 v{c+r}, v{c+r}, v{P+4*n+r}")
                for r in range(4):
                    A(f"v_mul_f32 v{c+r}, v{c+r}, v{t+r}")
                A(f"v_cvt_pk_bf16_f32 v{o_}, v{c}, v{c+1}")
                A(f"v_cvt_pk_bf16_f32 v{o_+1}, v{c+2}, v{c+3}")
                if f % 2 == 1:
                    A(f"s_mov_b32 s47, {a_*90*1024}")
                    A(f"buffer_store_dwordx4 {v(o_-2,4)}, v3, s[24:27], s47 offen offset:{(f//2)*1024} {WT}")
                elif f == 8:
                    A(f"s_mov_b32 s47, {a_*90*1024}")
                    A(f"buffer_store_dwordx2 {v(o_,2)}, v4, s[24:27], s47 offen")
                n += 1
        if st_ is not None and jj == 0:
            A("s_cmp_eq_u32 s34, 0")
            A(f"s_cbranch_scc0 {L('end')}")
            stamp_store(A, 8, st_, [50, 52, 54, 64, 66, 56], 60)
        A("s_endpgm")

    A.label(L("loader"))
    if opt.get("prio", 0) == 2: A("s_setprio 2")
    A("s_sub_u32 s38, s34, 4")
    A("v_lshrrev_b32 v5, 3, v0")
    A("v_and_b32 v6, 7, v0")
    A("v_xor_b32 v6, v6, v5")
    A("v_lshlrev_b32 v6, 4, v6")
    A("s_lshl_b32 s40, s32, 7")
    A("s_lshl_b32 s41, s38, 5")
    A("s_add_u32 s40, s40, s41")
    A("v_add_u32 v5, s40, v5")
    A("v_lshlrev_b32 v5, 12, v5")
    A("v_add_u32 v1, v5, v6")
    for p in range(1, 4):
        A(f"v_add_u32 v{1+p}, {p*(32768-1024)}, v1")
    A("s_mul_i32 s41, s38, 5")
    A("s_cmp_eq_u32 s38, 3")
    A("s_cselect_b32 s41, 14, s41")
    A("s_lshl_b32 s41, s41, 10")
    A("v_lshlrev_b32 v6, 4, v0")
    A("v_add_u32 v5, s41, v6")
    A("s_lshl_b32 s40, s38, 12")
    A("s_add_u32 s41, s41, 16384")
    A("s_waitcnt lgkmcnt(0)")
    srd(A, 12, 4, S * S * 2)
    A(f"s_mul_i32 s37, s33, {NST * 18432}")
    A(f"s_add_u32 s16, s8, s37")
    A(f"s_addc_u32 s17, s9, 0")
    A(f"s_mov_b32 s18, {NST * 18432}")
    A("s_mov_b32 s19, 0x00020000")
    sg = opt.get("stag", "none")
    if sg == "none": A("s_mov_b32 s57, 0")
    elif sg == "sum":
        A("s_lshr_b32 s57, s36, 2"); A("s_and_b32 s58, s36, 3"); A("s_add_u32 s57, s57, s58"); A("s_and_b32 s57, s57, 7")
    elif sg == "fb":
        A("s_and_b32 s57, s36, 3")
    elif sg == "tb":
        A("s_lshr_b32 s57, s36, 2")
    elif sg == "xcd":
        A("s_lshl_b32 s57, s35, 2")
    elif sg == "xcdsum":
        A("s_lshr_b32 s57, s36, 2"); A("s_and_b32 s58, s36, 3"); A("s_add_u32 s57, s57, s58"); A("s_and_b32 s57, s57, 3"); A("s_lshl_b32 s58, s35, 2"); A("s_add_u32 s57, s57, s58")
    A("s_cmp_ge_u32 s38, 2")
    A(f"s_cbranch_scc1 {L('ld4')}")
    text = A.text()

    def loader(NB):
        A = Stream()
        tok = {}
        def issue(st, between=lambda: None):
            slot = st % 4
            A(f"s_add_u32 m0, s40, {slot*SLOT}")
            A(f"s_add_u32 s43, s57, {st}")
            A("s_and_b32 s43, s43, 31")
            A("s_lshl_b32 s42, s43, 7")
            A("s_mul_i32 s43, s43, 18432")
            for p in range(4):
                A.vm(f"buffer_load_dwordx4 v{1+p}, s[12:15], s42 offen offset:{p*1024} lds")
                between()
            A(f"s_add_u32 m0, s41, {slot*SLOT}")
            A("s_nop 0")
            for p in range(4):
                tok[st] = A.vm(f"buffer_load_dwordx4 v5, s[16:19], s43 offen offset:{p*1024} lds")
                between()
            if NB == 5:
                A(f"s_add_u32 m0, s41, {slot*SLOT+4096}")
                A(f"s_add_u32 s43, s43, 4096")
                tok[st] = A.vm(f"buffer_load_dwordx4 v5, s[16:19], s43 offen lds")
        for st in range(4): issue(st)
        PFD = opt.get("pfd", 0) if NB == 4 else 0
        if PFD:
            A("s_cmp_eq_u32 s38, 2")
            A("s_cselect_b32 s60, s12, s16")
            A("s_cselect_b32 s61, s13, s17")
            A("s_cselect_b32 s62, s14, s18")
            A("s_mov_b32 s63, 0x00020000")
            A("s_movk_i32 s64, 256")
            A("s_cselect_b32 s64, s64, 0x9000")
            A("s_and_b32 s58, s36, 3")
            A("s_lshl_b32 s58, s58, 5")
            A("s_lshl_b32 s59, s32, 7")
            A("s_add_u32 s58, s58, s59")
            A("v_lshrrev_b32 v200, 1, v0")
            A("v_add_u32 v200, s58, v200")
            A("v_lshlrev_b32 v200, 12, v200")
            A("v_and_b32 v201, 1, v0")
            A("v_lshl_add_u32 v200, v201, 7, v200")
            A("s_lshr_b32 s58, s36, 2")
            A("s_mul_i32 s58, s58, 4608")
            A("v_lshlrev_b32 v201, 7, v0")
            A("v_add_u32 v201, s58, v201")
            A("v_cmp_gt_u32 vcc, 36, v0")
            A("v_mov_b32 v202, 0x7fffffff")
            A("v_cndmask_b32 v201, v202, v201, vcc")
            A("s_cmp_eq_u32 s38, 2")
            A("s_cselect_b64 vcc, -1, 0")
            A("v_cndmask_b32 v200, v201, v200, vcc")
            A("s_lshl_b32 s65, s64, 1")
            def pf():
                A.vm("buffer_load_dword v202, v200, s[60:63], s65 offen")
                A("s_add_u32 s65, s65, s64")
            for _ in range(PFD // 2): pf()
        srd(A, 20, 8, SZ_Z, WS_Z1)
        srd(A, 24, 8, SZ_YC, WS_YC)
        srd(A, 28, 8, SZ_QKV, WS_QKV)
        Q = []
        ev = {}
        R = lambda t: Q.append(lambda: A(t))
        def Rvm(nm, t): Q.append(lambda: ev.__setitem__(nm, A.vm(t)))
        def Rlg(nm, t): Q.append(lambda: ev.__setitem__(nm, A.lg(t)))
        def Rwv(nm): Q.append(lambda: A.wait_vm(ev[nm]))
        def Rwl(nm): Q.append(lambda: A.wait_lg(ev[nm]))
        QR, KR, LG, OA, TT = 16, 28, 100, 108, 126
        QU = 140
        Z1 = 160
        AD = 204
        KD = 213
        A("s_lshr_b32 s50, s2, 3")
        A("s_and_b32 s51, s2, 7")
        A("s_mul_i32 s52, s51, 4608")
        A("s_lshl_b32 s53, s50, 1")
        A("s_mul_i32 s53, s53, 110592")
        A("v_lshrrev_b32 v7, 5, v0")
        A("v_mul_u32_u24 v7, 110592, v7")
        A("v_and_b32 v8, 31, v0")
        A("v_lshl_add_u32 v7, v8, 4, v7")
        A("v_add_u32 v7, s53, v7")
        for n in range(3):
            A(f"s_add_u32 s54, s38, {4*n}")
            A("s_min_u32 s54, s54, 8")
            A("s_mul_i32 s55, s54, 1280")
            A(f"s_add_u32 m0, s55, {KV + KVSZ + 256}")
            A("s_lshl_b32 s54, s54, 9")
            A("s_add_u32 s54, s54, s52")
            ev["q"] = A.vm("buffer_load_dwordx4 v7, s[28:31], s54 offen lds")
        A("s_mul_i32 s54, s38, 192")
        A("s_sub_u32 s53, s53, 110592")
        for n in range(3):
            A(f"v_add_u32 v7, s54, v0")
            if n: A(f"v_add_u32 v7, {64*n}, v7")
            A("v_mul_u32_u24 v8, 820, v7")
            A("v_lshrrev_b32 v8, 16, v8")
            A("v_mul_u32_u24 v9, 80, v8")
            A("v_sub_u32 v7, v7, v9")
            A("v_add_u32 v7, 16, v7")
            A("v_lshrrev_b32 v9, 5, v7")
            A("v_mul_u32_u24 v9, 110592, v9")
            A("v_lshl_add_u32 v9, v8, 9, v9")
            A("v_and_b32 v7, 31, v7")
            A("v_lshl_add_u32 v9, v7, 4, v9")
            A(f"v_add_u32 v{KD+n}, s53, v9")
        A("s_mul_i32 s53, s38, 3072")
        def kv_dma(x):
            A(f"s_add_u32 s54, s52, {x*72*512}")
            for n in range(3):
                A(f"s_add_u32 m0, s53, {KV + (x-1)*KVSZ + n*1024}")
                A("s_nop 0")
                ev["kv"] = A.vm(f"buffer_load_dwordx4 v{KD+n}, s[28:31], s54 offen lds")
        kv_dma(1)
        A("v_lshrrev_b32 v9, 2, v0")
        A("s_lshl_b32 s54, s38, 4")
        A("v_add_u32 v9, s54, v9")
        A("s_lshl_b32 s54, s50, 6")
        A("v_add_u32 v10, s54, v9")
        A("v_and_b32 v11, 3, v0")
        A("v_mul_u32_u24 v12, 36, v11")
        A(f"v_lshlrev_b32 v13, 4, v9")
        A(f"v_add_u32 v13, {KV + 32}, v13")
        for d in range(9):
            R(f"v_add_u32 v14, {4*d}, v12")
            R("v_lshrrev_b32 v15, 4, v14")
            R(f"v_mad_u32_u24 v{AD+d}, v15, s55, v13")
            R("v_and_b32 v14, 15, v14")
            R(f"v_add_u32 v{AD+d}, v{AD+d}, v14")
        A("s_movk_i32 s55, 1280")
        A("s_lshl_b32 s46, s32, 4")
        A("s_add_u32 s46, s46, s33")
        A("s_lshl_b32 s46, s46, 2")
        A("s_add_u32 s46, s46, s38")
        A("s_mul_i32 s46, s46, 9216")
        z1q = []
        for p in range(9):
            def g(p=p):
                ev["z1"] = A.vm(f"buffer_load_dwordx4 {v(Z1+p*4,4)}, v6, s[20:23], s46 offen offset:{(p%4)*1024}")
                if p % 4 == 3: A("s_add_u32 s46, s46, 4096")
            z1q.append(g)
        A("s_mov_b32 s56, 0xffff0000")
        A(f"v_mov_b32 v{TT+12}, {f32(C1)}")
        nsetup = len(Q)
        def win_reads(base):
            for w in range(8):
                for d in range(9):
                    Rlg("win", f"ds_read_b32 v{KR+9*w+d}, v{AD+d} offset:{base + (14-2*w)*16}")
        for d in range(9):
            Rlg("qr", f"ds_read_b32 v{QR+d}, v{AD+d} offset:{KVSZ + 224}")
        nq = len(Q)
        win_reads(0)
        Rwl("qr")
        for d in range(9):
            R(f"v_lshlrev_b32 v{QU+2*d}, 16, v{QR+d}")
            R(f"v_and_b32 v{QU+2*d+1}, s56, v{QR+d}")
        Rwl("win")
        for w in range(8):
            for d in range(9):
                x = KR + 9 * w + d
                t = TT + (d % 2) * 2
                R(f"v_lshlrev_b32 v{t}, 16, v{x}")
                R(f"v_and_b32 v{t+1}, s56, v{x}")
                if d < 2:
                    a_ = TT + 4 + d * 2
                    R(f"v_mul_f32 v{a_}, v{t}, v{QU+2*d}")
                    R(f"v_mul_f32 v{a_+1}, v{t+1}, v{QU+2*d+1}")
                else:
                    a_ = TT + 4 + (d % 2) * 2
                    R(f"v_fmac_f32 v{a_}, v{t}, v{QU+2*d}")
                    R(f"v_fmac_f32 v{a_+1}, v{t+1}, v{QU+2*d+1}")
            R(f"v_add_f32 v{TT+4}, v{TT+4}, v{TT+5}")
            R(f"v_add_f32 v{TT+6}, v{TT+6}, v{TT+7}")
            R(f"v_add_f32 v{LG+w}, v{TT+4}, v{TT+6}")
        Q.append(lambda: ev.__setitem__("vread_k", ev["k"]))
        win_reads(KVSZ)
        sc = (18 ** -0.5) * 1.4426950408889634
        R(f"v_mov_b32 v{TT}, {f32(-1e9)}")
        for w in range(8): R(f"v_mul_f32 v{LG+w}, {f32(sc)}, v{LG+w}")
        for w in range(1, 8):
            def g(w=w):
                A(f"v_cmp_gt_u32 vcc, {2*w}, v10")
                A(f"v_cndmask_b32 v{LG+w}, v{LG+w}, v{TT}, vcc")
            Q.append(g)
        R(f"v_max3_f32 v{TT+1}, v{LG}, v{LG+1}, v{LG+2}")
        R(f"v_max3_f32 v{TT+2}, v{LG+3}, v{LG+4}, v{LG+5}")
        R(f"v_max3_f32 v{TT+1}, v{TT+1}, v{LG+6}, v{LG+7}")
        R(f"v_max_f32 v{TT+1}, v{TT+1}, v{TT+2}")
        for w in range(8): R(f"v_sub_f32 v{LG+w}, v{LG+w}, v{TT+1}")
        for w in range(8): R(f"v_exp_f32 v{LG+w}, v{LG+w}")
        R(f"v_add_f32 v{TT+1}, v{LG}, v{LG+1}")
        R(f"v_add_f32 v{TT+2}, v{LG+2}, v{LG+3}")
        R(f"v_add_f32 v{TT+3}, v{LG+4}, v{LG+5}")
        R(f"v_add_f32 v{TT+4}, v{LG+6}, v{LG+7}")
        R(f"v_add_f32 v{TT+1}, v{TT+1}, v{TT+2}")
        R(f"v_add_f32 v{TT+3}, v{TT+3}, v{TT+4}")
        R(f"v_add_f32 v{TT+1}, v{TT+1}, v{TT+3}")
        R(f"v_rcp_f32 v{TT+8}, v{TT+1}")
        Rwl("win")
        for w in range(8):
            for d in range(9):
                x = KR + 9 * w + d
                t = TT + (d % 2) * 2
                R(f"v_lshlrev_b32 v{t}, 16, v{x}")
                R(f"v_and_b32 v{t+1}, s56, v{x}")
                op = "v_mul_f32" if w == 0 else "v_fmac_f32"
                R(f"{op} v{OA+2*d}, v{t}, v{LG+w}")
                R(f"{op} v{OA+2*d+1}, v{t+1}, v{LG+w}")
        for d in range(18): R(f"v_mul_f32 v{OA+d}, v{OA+d}, v{TT+8}")
        R("s_lshl_b32 s54, s50, 2")
        R("s_add_u32 s54, s54, s38")
        R("s_mul_i32 s54, s54, 92160")
        R("s_lshl_b32 s58, s51, 11")
        R("s_add_u32 s58, s58, s54")
        R("s_lshr_b32 s59, s51, 2")
        R("s_lshl_b32 s59, s59, 10")
        R("s_add_u32 s54, s54, s59")
        R("s_and_b32 s59, s51, 3")
        R("s_lshl_b32 s59, s59, 4")
        R("s_add_u32 s54, s54, s59")
        R("s_add_u32 s54, s54, 16384")
        R(f"v_lshrrev_b32 v{TT}, 2, v0")
        R(f"v_lshlrev_b32 v{TT}, 6, v{TT}")
        R(f"v_lshl_add_u32 v{TT}, v11, 2, v{TT}")
        for d in range(9):
            R(f"v_cvt_pk_bf16_f32 v{KR+d}, v{OA+2*d}, v{OA+2*d+1}")
        Rvm("o", f"buffer_store_dwordx4 {v(KR,4)}, v6, s[24:27], s58 offen {WT}")
        Rvm("o", f"buffer_store_dwordx4 {v(KR+4,4)}, v6, s[24:27], s58 offen offset:1024 {WT}")
        Rvm("o", f"buffer_store_dword v{KR+8}, v{TT}, s[24:27], s54 offen {WT}")
        R(f"v_mov_b32 v{TT+13}, 0")
        R(f"v_mov_b32 v{TT+13}, 0")
        Rwv("z1")
        for g_ in range(18):
            P = Z1 + 2 * g_
            X = [TT + r for r in range(4)]; U = [TT + 4 + r for r in range(4)]
            R(f"v_lshlrev_b32 v{X[0]}, 16, v{P}")
            R(f"v_and_b32 v{X[1]}, s56, v{P}")
            R(f"v_lshlrev_b32 v{X[2]}, 16, v{P+1}")
            R(f"v_and_b32 v{X[3]}, s56, v{P+1}")
            for r in range(4): R(f"v_mul_f32 v{U[r]}, v{X[r]}, v{X[r]}")
            for r in range(4): R(f"v_fmamk_f32 v{U[r]}, v{U[r]}, {f32(C2)}, v{TT+12}")
            for r in range(4): R(f"v_mul_f32 v{U[r]}, v{U[r]}, v{X[r]}")
            for r in range(4): R(f"v_exp_f32 v{U[r]}, v{U[r]}")
            for r in range(4): R(f"v_add_f32 v{U[r]}, 1.0, v{U[r]}")
            for r in range(4): R(f"v_rcp_f32 v{U[r]}, v{U[r]}")
            for r in range(4): R(f"v_mul_f32 v{X[r]}, v{X[r]}, v{U[r]}")
            R(f"v_cvt_pk_bf16_f32 v{P}, v{X[0]}, v{X[1]}")
            R(f"v_cvt_pk_bf16_f32 v{P+1}, v{X[2]}, v{X[3]}")
        if opt.get("no_fill"):
            del Q[nsetup:]
        def run(n):
            for _ in range(n):
                if Q: Q.pop(0)()
        A.wait_vm(tok[0])
        A("s_barrier")
        run(nsetup)
        A.wait_vm(tok[1])
        A("s_barrier")
        K0 = 2
        LAST = opt.get("last", 28)
        for k in range(NST):
            ev["k"] = k
            if k == K0 + 1: kv_dma(2)
            nf = -(-len(Q) // (LAST - k + 1)) if K0 <= k <= LAST else 0
            if k + 4 < NST:
                per = -(-nf // 8)
                issue(k + 4, lambda: run(per))
            else:
                run(nf)
            if PFD and k % 2 == 0 and k + 4 + PFD < NST: pf()
            if 2 <= k < 11: z1q.pop(0)()
            if k == 29:
                A("s_mul_i32 s47, s38, 9216")
                A("v_add_u32 v7, s47, v6")
                for q_ in range(9):
                    A.lg(f"ds_write_b128 v7, {v(Z1+4*q_,4)} offset:{q_*1024}")
            if k + 2 < NST: A.wait_vm(tok[k + 2])
            if k == K0 - 1: A.wait_vm(ev["kv"])
            if k == K0: A.wait_lg(ev.get("qr"))
            if k == K0 + 3:
                A.wait_vm(ev["kv"]); assert "vread_k" not in ev
            if k == NST - 1: A.drain_lg()
            A("s_barrier")
        A("s_endpgm")
        return A.text()
    text += loader(5)
    text += L("ld4") + ":\n" + loader(4)
    text += L("end") + ":\n    s_endpgm\n"
    return text, kernel_desc(name, 256, 80), f"; @launch kernel={name} grid=(256,1,1) block=(512,1,1) lds=163840"
```

```python
from asmlib import *
from layout import *
from k1 import gen_k1, f32, C1, C2, SPIN

S3 = 34816
N3 = 32
KV = 4 * S3
KVSZ = 12288
S4 = 17408
NS4 = 9
N4S, N4G = 9, 36
N4 = N4S + N4G
Z1 = 160

def gen_mega(name, opt=None):
    opt = dict(opt or {})
    st_ = opt.get("stamp", None)
    LD = opt.get("ld", "sc1")

    def zflag(A, L):
        A("s_cmp_eq_u32 s50, 0")
        A(f"s_cbranch_scc0 {L('fz')}")
        srd(A, 40, 46, SZ_FLAG, WS_FLAG)
        A("s_lshl_b32 s63, s49, 7")
        A("s_lshl_b32 s64, s48, 2")
        A("s_add_u32 s63, s63, s64")
        A("v_mov_b32 v7, s71")
        A("s_mov_b64 exec, 1")
        A.vm_opt("buffer_store_dword v7, off, s[40:43], s63 offset:3072 sc1")
        A("s_mov_b64 exec, -1")
        A.label(L("fz"))
    opt["zflag"] = zflag

    def flag_store(A, L, tag, wave, off):
        A(f"s_cmp_eq_u32 s34, {wave}")
        A(f"s_cbranch_scc0 {L(tag)}")
        A("s_lshl_b32 s68, s2, 2")
        A("v_mov_b32 v254, s71")
        A("s_mov_b64 exec, 1")
        A.vm_opt(f"buffer_store_dword v254, off, s[72:75], s68 offset:{off} sc1")
        A("s_mov_b64 exec, -1")
        A.label(L(tag))

    def poll(A, L, tag, vaddr, n, soff, off, tmp):
        A("s_mov_b32 s69, 0")
        A.label(L(tag))
        A(f"buffer_load_dword{'x4' if n == 4 else ''} {v(tmp,n)}, {vaddr}, s[72:75], {soff} offen offset:{off} sc1")
        A("s_add_u32 s69, s69, 1")
        A(f"s_cmp_gt_u32 s69, {SPIN}")
        A(f"s_cbranch_scc1 {L(tag + 'ok')}")
        A("s_waitcnt vmcnt(0)")
        for q in range(n): A(f"v_xor_b32 v{tmp+q}, s71, v{tmp+q}")
        if n == 4:
            A(f"v_or_b32 v{tmp}, v{tmp}, v{tmp+1}")
            A(f"v_or3_b32 v{tmp}, v{tmp}, v{tmp+2}, v{tmp+3}")
        A(f"v_cmp_ne_u32 vcc, 0, v{tmp}")
        A("s_nop 4")
        A(f"s_cbranch_vccz {L(tag + 'ok')}")
        A("s_sleep 2")
        A(f"s_branch {L(tag)}")
        A.label(L(tag + "ok"))

    def common(A):
        A("s_load_dwordx2 s[4:5], s[0:1], 48")
        A("s_load_dwordx2 s[6:7], s[0:1], 0")
        A("s_load_dwordx2 s[8:9], s[0:1], 64")
        A("s_mov_b32 s32, s48")
        A("s_mov_b32 s33, s49")
        A("s_mov_b32 s34, s50")
        srd(A, 72, 46, SZ_FLAG, WS_FLAG)

    def compute(A, ctx):
        L = ctx["L"]; acc1 = ctx["acc"]
        ctx["flush"](99)
        A.drain_lg()
        A("s_barrier")
        if opt.get("st2"): stamp(A, 82)
        A("s_lshl_b32 s63, s51, 12")
        A(f"s_add_u32 s63, s63, {KV}")
        A("v_lshlrev_b32 v1, 4, v0")
        A("v_add_u32 v1, s63, v1")
        for a_ in range(4):
            c = acc1(a_, 0)
            for q in range(4): A(f"v_cvt_pk_bf16_f32 v{c+q}, v{c+2*q}, v{c+2*q+1}")
            A.lg(f"ds_write_b128 v1, {v(c,4)} offset:{a_*1024}")
        common(A)
        ACC = 112; WF = [8, 24]; ZF = [40, 76]
        acc = lambda a_, f: ACC + (a_ * 9 + f) * 4
        A("s_and_b32 s38, s34, 1")
        A("s_lshr_b32 s39, s34, 1")
        A("v_and_b32 v1, 15, v0")
        A("s_lshl_b32 s40, s32, 7")
        A("s_lshl_b32 s41, s38, 6")
        A("s_add_u32 s40, s40, s41")
        A("v_add_u32 v7, s40, v1")
        A("v_lshlrev_b32 v7, 1, v7")
        A("v_lshrrev_b32 v3, 4, v0")
        A("s_lshl_b32 s41, s39, 2")
        A("v_add_u32 v3, s41, v3")
        A("v_and_b32 v4, 7, v0")
        A("v_xor_b32 v3, v3, v4")
        A("v_lshlrev_b32 v3, 4, v3")
        A("v_lshlrev_b32 v4, 7, v1")
        A("v_add_u32 v3, v3, v4")
        A("s_lshl_b32 s41, s38, 13")
        A("v_add_u32 v1, s41, v3")
        A(f"v_add_u32 v2, {2*S3}, v1")
        A("s_mul_i32 s41, s39, 9216")
        A("s_add_u32 s41, s41, 16384")
        A("v_and_b32 v8, 3, v0")
        A("v_lshlrev_b32 v3, 8, v8")
        A("v_bfe_u32 v9, v0, 4, 1")
        A("v_lshl_add_u32 v3, v9, 7, v3")
        A("v_bfe_u32 v9, v0, 2, 2")
        A("v_lshl_add_u32 v3, v9, 4, v3")
        A("v_and_b32 v9, 1, v0")
        A("v_lshl_add_u32 v3, v9, 6, v3")
        A("v_lshrrev_b32 v9, 5, v0")
        A("v_lshrrev_b32 v8, 1, v8")
        A("v_xor_b32 v9, v9, v8")
        A("v_lshl_add_u32 v3, v9, 3, v3")
        A("v_add_u32 v3, s41, v3")
        A(f"v_add_u32 v4, {2*S3}, v3")
        A("s_waitcnt lgkmcnt(0)")
        srd(A, 24, 46, SZ_YC, WS_YC)
        srd(A, 28, 4, S * 2)
        A("s_cmp_eq_u32 s34, 0")
        A(f"s_cbranch_scc0 {L('pf1ok')}")
        A("v_and_b32 v8, 15, v0")
        A("v_lshlrev_b32 v8, 2, v8")
        A("s_lshl_b32 s57, s33, 7")
        poll(A, L, "pf1", "v8", 1, "s57", 3072, 220)
        A("s_barrier")
        if opt.get("st2"): stamp(A, 76)
        A("s_lshl_b32 s41, s39, 6")
        A("buffer_load_ushort v5, v7, s[28:31], s41 offen")
        A("buffer_load_ushort v6, v7, s[28:31], s41 offen offset:32")
        A("v_xor_b32 v7, 64, v3")
        A("v_xor_b32 v0, 64, v4")
        def reads(st, slot):
            out = []
            wa = "v1" if slot < 2 else "v2"
            za = "v3" if slot < 2 else "v4"
            zb = "v7" if slot < 2 else "v0"
            so = (slot & 1) * S3
            def z(f):
                out.append(f"ds_read_b64_tr_b16 {v(ZF[st]+4*f,2)}, {za} offset:{so + f*1024}")
                out.append(f"ds_read_b64_tr_b16 {v(ZF[st]+4*f+2,2)}, {zb} offset:{so + f*1024}")
            z(0)
            for a_ in range(4):
                out.append(f"ds_read_b128 {v(WF[st]+4*a_,4)}, {wa} offset:{so + a_*2048}")
            for f in range(1, 9): z(f)
            return out
        def body(u, first=False, cmp=None):
            st = u & 1
            rd = reads(st ^ 1, (u + 1) & 3)
            n = 0
            for f in range(9):
                for a_ in range(4):
                    cc = "0" if first else v(acc(a_, f), 4)
                    A(f"v_mfma_f32_16x16x32_bf16 {v(acc(a_,f),4)}, {v(ZF[st]+4*f,4)}, {v(WF[st]+4*a_,4)}, {cc}")
                    if n % 3 != 2 and rd: A(rd.pop(0))
                    n += 1
            if cmp:
                A("s_add_u32 s43, s43, 1")
                A(f"s_cmp_lt_u32 s43, {cmp}")
            A("s_waitcnt lgkmcnt(0)")
            A("s_barrier")
        A("s_barrier")
        for r in reads(0, 0): A(r)
        A("s_waitcnt vmcnt(0) lgkmcnt(0)")
        A("s_barrier")
        A("s_mov_b32 s43, 0")
        if st_ is not None: stamp(A, 84)
        body(0, first=True)
        A(f"s_branch {L('c1')}")
        A.raw(".p2align 6")
        A.label(L("cloop"))
        body(0)
        A.label(L("c1"))
        body(1); body(2); body(3, cmp=N3 // 4)
        A(f"s_cbranch_scc1 {L('cloop')}")
        if st_ is not None: stamp(A, 86)
        XB = 40960
        A("v_mbcnt_lo_u32_b32 v0, -1, 0")
        A("v_mbcnt_hi_u32_b32 v0, -1, v0")
        A("s_mul_i32 s41, s34, 18432")
        A(f"s_add_u32 s41, s41, {XB}")
        A("v_lshlrev_b32 v7, 4, v0")
        A("v_add_u32 v8, s41, v7")
        A("s_xor_b32 s42, s34, 2")
        A("s_mul_i32 s42, s42, 18432")
        A(f"s_add_u32 s42, s42, {XB}")
        A("v_add_u32 v9, s42, v7")
        A("s_lshl_b32 s42, s38, 1")
        A("s_add_u32 s42, s42, s39")
        A("s_mul_i32 s42, s42, 9216")
        A("v_add_u32 v1, s42, v7")
        A("s_cmp_eq_u32 s39, 0")
        A(f"s_cbranch_scc0 {L('e1')}")
        for jj in range(2):
            if jj == 1: A.label(L("e1"))
            A("s_nop 1")
            keep = [0, 1] if jj == 0 else [2, 3]
            send = [2, 3] if jj == 0 else [0, 1]
            n = 0
            for f in range(9):
                for a_ in send:
                    A(f"ds_write_b128 v8, {v(acc(a_,f),4)} offset:{n*1024}")
                    n += 1
            ZZ = 76
            for f in range(9):
                A(f"ds_read_b128 {v(ZZ+4*f,4)}, v1 offset:{f*1024}")
            A("s_lshl_b32 s36, s32, 3")
            A("s_lshl_b32 s37, s38, 2")
            A("s_add_u32 s36, s36, s37")
            A("s_mul_i32 s36, s36, 90")
            A("s_add_u32 s36, s36, 18")
            A("s_lshl_b32 s36, s36, 10")
            A("s_lshl_b32 s44, s33, 12")
            A("s_add_u32 s44, s44, s36")
            A("s_lshl_b32 s45, s33, 9")
            A("s_add_u32 s45, s45, s36")
            A("s_add_u32 s45, s45, 0x10000")
            A("v_add_u32 v3, s44, v7")
            A("v_lshlrev_b32 v4, 3, v0")
            A("v_add_u32 v4, s45, v4")
            A("s_mov_b32 s48, 0xffff0000")
            A("s_waitcnt vmcnt(0)")
            A("v_lshlrev_b32 v5, 16, v5")
            A("v_lshlrev_b32 v6, 16, v6")
            A("s_waitcnt lgkmcnt(0)")
            A("s_barrier")
            P = acc(send[0], 0)
            for n in range(18):
                A(f"ds_read_b128 {v(P+4*n,4)}, v9 offset:{n*1024}")
            for f in range(9):
                for ai, a_ in enumerate(keep):
                    c = acc(a_, f)
                    for r in range(4): A(f"v_add_f32 v{c+r}, v{5+ai}, v{c+r}")
            A("s_waitcnt lgkmcnt(0)")
            A("s_barrier")
            n = 0
            for f in range(9):
                for ai, a_ in enumerate(keep):
                    c = acc(a_, f)
                    t = 8 + (n % 2) * 4
                    o_ = 16 + ((f // 2) % 2 * 2 + ai) * 4 + (f % 2) * 2
                    z = ZZ + 4 * f + 2 * ai
                    A(f"v_lshlrev_b32 v{t}, 16, v{z}")
                    A(f"v_and_b32 v{t+1}, s48, v{z}")
                    A(f"v_lshlrev_b32 v{t+2}, 16, v{z+1}")
                    A(f"v_and_b32 v{t+3}, s48, v{z+1}")
                    for r in range(4): A(f"v_add_f32 v{c+r}, v{c+r}, v{P+4*n+r}")
                    for r in range(4): A(f"v_mul_f32 v{c+r}, v{c+r}, v{t+r}")
                    A(f"v_cvt_pk_bf16_f32 v{o_}, v{c}, v{c+1}")
                    A(f"v_cvt_pk_bf16_f32 v{o_+1}, v{c+2}, v{c+3}")
                    if f % 2 == 1:
                        A(f"s_mov_b32 s37, {a_*90*1024}")
                        A(f"buffer_store_dwordx4 {v(o_-2,4)}, v3, s[24:27], s37 offen offset:{(f//2)*1024} sc1")
                    elif f == 8 and not opt.get("no8"):
                        A(f"s_mov_b32 s37, {a_*90*1024}")
                        A(f"buffer_store_dwordx2 {v(o_,2)}, v4, s[24:27], s37 offen sc1")
                    n += 1
            if jj == 0: A(f"s_branch {L('p3')}")
        A.label(L("p3"))
        if opt.get("st2"): stamp(A, 78)
        ids4(A)
        YF, WF4 = [8, 36], [16, 44]
        ACS, ACG = 64, 104
        XR = 144
        A("s_lshl_b32 s40, s32, 6")
        A("s_lshl_b32 s41, s38, 5")
        A("s_add_u32 s40, s40, s41")
        A("s_lshl_b32 s41, s39, 4")
        A("s_add_u32 s40, s40, s41")
        A("v_and_b32 v1, 15, v0")
        A("v_add_u32 v1, s40, v1")
        A("v_mul_u32_u24 v1, 1152, v1")
        A("v_lshrrev_b32 v2, 4, v0")
        A("v_lshlrev_b32 v3, 3, v2")
        A("s_mul_i32 s41, s33, 144")
        A("v_add3_u32 v7, v1, v3, s41")
        A("s_mul_i32 s41, s39, 4608")
        A("s_add_u32 s41, s41, 8192")
        A("v_lshlrev_b32 v3, 7, v2")
        A("v_and_b32 v4, 7, v0")
        A("v_lshl_add_u32 v3, v4, 4, v3")
        A("v_add_u32 v3, s41, v3")
        A("v_lshlrev_b32 v1, 4, v0")
        A("v_add_u32 v2, s41, v1")
        A("s_lshl_b32 s40, s38, 2")
        A("s_add_u32 s40, s40, s39")
        A("s_lshl_b32 s40, s40, 10")
        A("v_add_u32 v156, s40, v1")
        A("v_lshlrev_b32 v157, 3, v0")
        A("v_add_u32 v157, s40, v157")
        A("v_and_b32 v1, 15, v0")
        A("v_lshlrev_b32 v1, 6, v1")
        A("v_lshrrev_b32 v4, 4, v0")
        A("v_lshl_add_u32 v1, v4, 4, v1")
        A("v_add_u32 v1, s40, v1")
        srd(A, 12, 6, S * D * 2)
        srd(A, 16, 8, S * D * 2)
        A(f"s_mov_b32 s42, {7*S4}")
        A("s_mov_b32 s43, 0")
        def reads4(st, split=False):
            o = [f"ds_read_b128 {v(YF[st],4)}, v4", f"ds_read_b128 {v(WF4[st],4)}, v5", f"ds_read_b128 {v(YF[st]+4,4)}, v4 offset:2048"]
            if split:
                o[0] = f"ds_read2st64_b64 {v(YF[st],4)}, v4 offset0:0 offset1:1"
                o[2] = f"ds_read2st64_b64 {v(YF[st]+4,4)}, v4 offset0:4 offset1:5"
            for dt in range(1, 4): o.append(f"ds_read_b128 {v(WF4[st]+4*dt,4)}, v5 offset:{dt*1024}")
            o.append(f"ds_read_b128 {v(WF4[st]+16,4)}, v6 offset:4096")
            return o
        def addr():
            A("v_add_u32 v4, s42, v1")
            A("v_add_u32 v5, s42, v2")
            A("v_add_u32 v6, s42, v3")
            A(f"s_add_u32 s42, s42, {S4}")
            A(f"s_cmp_eq_u32 s42, {NS4*S4}")
            A("s_cselect_b32 s42, 0, s42")
        def body4(ACC_, st, cmp=None, first=False, pre=None, split=False):
            rd = reads4(st ^ 1, split)
            n = 0
            for dt in range(5):
                for a_ in range(2):
                    c = ACC_ + (a_ * 5 + dt) * 4
                    if rd: A(rd.pop(0))
                    A(f"v_mfma_f32_16x16x32_bf16 {v(c,4)}, {v(WF4[st]+4*dt,4)}, {v(YF[st]+4*a_,4)}, {'0' if first else v(c,4)}")
                    n += 1
                    if n == 8:
                        addr()
                        if cmp:
                            A("s_add_u32 s43, s43, 1")
                            A(f"s_cmp_lt_u32 s43, {cmp}")
            A("s_waitcnt lgkmcnt(0)" if not pre else pre)
            A("s_barrier")
        addr()
        A("s_barrier")
        A("s_barrier")
        for r in reads4(0): A(r)
        addr()
        A("s_waitcnt lgkmcnt(0)")
        A("s_barrier")
        YW = opt.get("yw", 4)
        for k in range(9):
            if k == 7: A("v_mov_b32 v1, v156")
            body4(ACS, k & 1, first=(k == 0), pre=("s_waitcnt vmcnt(0) lgkmcnt(0)" if k == YW else None))
            if k == YW:
                if opt.get("st2"): stamp(A, 98)
                for dt in range(5):
                    A(f"buffer_load_dwordx2 {v(XR+2*dt,2)}, v7, s[12:15], 0 offen offset:{dt*32}")
        if st_ is not None: stamp(A, 96)
        body4(ACG, 1, first=True)
        A(f"s_branch {L('g1')}")
        A.label(L("gloop"))
        body4(ACG, 1)
        A.label(L("g1"))
        body4(ACG, 0, 15)
        A(f"s_cbranch_scc1 {L('gloop')}")
        A("v_mov_b32 v1, v157")
        body4(ACG, 1)
        for k in range(40, 45):
            body4(ACG, k & 1, split=True)
        if st_ is not None and not opt.get("st2"): stamp(A, 98)
        A("s_mul_i32 s40, s34, 10240")
        A("v_lshlrev_b32 v1, 4, v0")
        A("v_add_u32 v2, s40, v1")
        A("s_xor_b32 s41, s34, 2")
        A("s_mul_i32 s41, s41, 10240")
        A("v_add_u32 v3, s41, v1")
        A("s_cmp_eq_u32 s39, 0")
        A(f"s_cbranch_scc0 {L('h1')}")
        for jj in range(2):
            if jj == 1: A.label(L("h1"))
            A("s_nop 4")
            keep, send = jj, 1 - jj
            n = 0
            for ACC_ in (ACG, ACS):
                for dt in range(5):
                    A(f"ds_write_b128 v2, {v(ACC_+(send*5+dt)*4,4)} offset:{n*1024}")
                    n += 1
            A("s_waitcnt lgkmcnt(0)")
            A("s_barrier")
            P = 8
            for n in range(10): A(f"ds_read_b128 {v(P+4*n,4)}, v3 offset:{n*1024}")
            A("s_mov_b32 s40, 0xbfb8aa3b")
            A("s_mov_b32 s41, 0xffff0000")
            T = 48
            for dt in range(5):
                cg = ACG + (keep * 5 + dt) * 4
                A(f"s_waitcnt lgkmcnt({9-dt})")
                for r in range(4): A(f"v_add_f32 v{cg+r}, v{cg+r}, v{P+4*dt+r}")
                t = ACG + (send * 5 + dt) * 4
                for r in range(4): A(f"v_mul_f32 v{t+r}, s40, v{cg+r}")
                for r in range(4): A(f"v_exp_f32 v{t+r}, v{t+r}")
                for r in range(4): A(f"v_add_f32 v{t+r}, 1.0, v{t+r}")
                for r in range(4): A(f"v_rcp_f32 v{t+r}, v{t+r}")
            A("s_waitcnt vmcnt(0) lgkmcnt(0)")
            for dt in range(5):
                cs = ACS + (keep * 5 + dt) * 4
                cg = ACG + (keep * 5 + dt) * 4
                t = ACG + (send * 5 + dt) * 4
                for r in range(4): A(f"v_add_f32 v{cs+r}, v{cs+r}, v{P+20+4*dt+r}")
                A(f"v_lshlrev_b32 v{T+4}, 16, v{XR+2*dt}")
                A(f"v_and_b32 v{T+5}, s41, v{XR+2*dt}")
                A(f"v_lshlrev_b32 v{T+6}, 16, v{XR+2*dt+1}")
                A(f"v_and_b32 v{T+7}, s41, v{XR+2*dt+1}")
                for r in range(4): A(f"v_mul_f32 v{t+r}, v{t+r}, v{cg+r}")
                for r in range(4): A(f"v_fma_f32 v{t+r}, v{t+r}, v{cs+r}, v{T+4+r}")
                A(f"v_cvt_pk_bf16_f32 v{XR+2*dt}, v{t}, v{t+1}")
                A(f"v_cvt_pk_bf16_f32 v{XR+2*dt+1}, v{t+2}, v{t+3}")
                if dt == 4: A("s_mov_b32 exec_hi, 0")
                A(f"buffer_store_dwordx2 {v(XR+2*dt,2)}, v7, s[16:19], 0 offen offset:{dt*32}")
            if st_ is not None and jj == 0:
                A("s_mov_b64 exec, -1")
                A("s_cmp_eq_u32 s34, 0")
                A(f"s_cbranch_scc0 {L('end')}")
                stamp_store(A, 46, st_, [80, 88, 82, 76, 86, 78, 98, 96] if opt.get('st2') else [80, 82, 88, 84, 86, 96, 98, 90], 92)
            A("s_endpgm")

    def ids4(A):
        A("s_and_b32 s40, s2, 7")
        A("s_lshr_b32 s41, s2, 3")
        A("s_lshr_b32 s32, s40, 1")
        A("s_lshl_b32 s32, s32, 3")
        A("s_lshr_b32 s42, s41, 2")
        A("s_add_u32 s32, s32, s42")
        A("s_and_b32 s33, s40, 1")
        A("s_lshl_b32 s33, s33, 2")
        A("s_and_b32 s42, s41, 3")
        A("s_add_u32 s33, s33, s42")

    def loaders(A0, ctx):
        L = ctx["L"]; acc1 = ctx["acc"]
        A = A0
        ctx["flush"](99)
        A.drain_lg()
        A("s_barrier")
        last_store = A.nvm - 1
        for a_, tt in enumerate(ctx["tiles"][2]):
            c = acc1(a_, 0)
            for q in range(4): A(f"v_cvt_pk_bf16_f32 v{Z1+4*tt+q}, v{c+2*q}, v{c+2*q+1}")
        common(A)
        A("s_sub_u32 s38, s34, 4")
        A("v_lshrrev_b32 v5, 3, v0")
        A("v_and_b32 v6, 7, v0")
        A("v_xor_b32 v6, v6, v5")
        A("v_lshlrev_b32 v6, 4, v6")
        A("s_lshl_b32 s40, s32, 7")
        A("s_lshl_b32 s41, s38, 5")
        A("s_add_u32 s40, s40, s41")
        A("v_add_u32 v5, s40, v5")
        A("v_lshlrev_b32 v5, 12, v5")
        A("v_add_u32 v1, v5, v6")
        for p in range(1, 4): A(f"v_add_u32 v{1+p}, {p*(32768-1024)}, v1")
        A("s_mul_i32 s41, s38, 5")
        A("s_cmp_eq_u32 s38, 3")
        A("s_cselect_b32 s41, 14, s41")
        A("s_lshl_b32 s41, s41, 10")
        A("v_lshlrev_b32 v6, 4, v0")
        A("v_add_u32 v5, s41, v6")
        A("s_lshl_b32 s40, s38, 12")
        A("s_add_u32 s41, s41, 16384")
        srd(A, 12, 10, S * S * 2)
        A(f"s_mul_i32 s37, s33, {N3 * 18432}")
        A(f"s_add_u32 s16, s46, s37")
        A(f"s_addc_u32 s17, s47, 0")
        A(f"s_mov_b32 s18, {N3 * 18432}")
        A("s_mov_b32 s19, 0x00020000")
        def issueA(A, st, between=lambda: None):
            A(f"s_add_u32 m0, s40, {(st%4)*S3}")
            A(f"s_movk_i32 s42, {st*128}")
            for p in range(4):
                A.vm(f"buffer_load_dwordx4 v{1+p}, s[12:15], s42 offen offset:{p*1024} lds")
                between()
        srd(A, 24, 46, SZ_YC, WS_YC)
        srd(A, 28, 46, SZ_QKV, WS_QKV)
        for st in range(4): issueA(A, st)
        A("s_waitcnt lgkmcnt(0)")
        A("s_barrier")
        A("s_cmp_ge_u32 s38, 2")
        A(f"s_cbranch_scc1 {L('ld4')}")
        base = A
        QR, KR, LG, OA, TT, QU, AD, KD = 16, 28, 100, 108, 126, 140, 204, 213
        def att_setup(A):
            A(f"s_add_u32 s53, s40, {KV}")
            A("v_add_u32 v7, s53, v6")
            for a_ in range(4): A.lg(f"ds_read_b128 {v(Z1+4*a_,4)}, v7 offset:{a_*1024}")
            A("s_lshr_b32 s50, s2, 3")
            A("s_and_b32 s51, s2, 7")
            A("s_mul_i32 s52, s51, 4608")
            A("s_lshl_b32 s53, s50, 1")
            A("s_mul_i32 s53, s53, 110592")
            A("v_lshrrev_b32 v216, 5, v0")
            A("v_mul_u32_u24 v216, 110592, v216")
            A("v_and_b32 v8, 31, v0")
            A("v_lshl_add_u32 v216, v8, 4, v216")
            A("v_add_u32 v216, s53, v216")
            A("s_mul_i32 s54, s38, 192")
            A("s_sub_u32 s53, s53, 110592")
            for n in range(3):
                A(f"v_add_u32 v7, s54, v0")
                if n: A(f"v_add_u32 v7, {64*n}, v7")
                A("v_mul_u32_u24 v8, 820, v7")
                A("v_lshrrev_b32 v8, 16, v8")
                A("v_mul_u32_u24 v9, 80, v8")
                A("v_sub_u32 v7, v7, v9")
                A("v_add_u32 v7, 16, v7")
                A("v_lshrrev_b32 v9, 5, v7")
                A("v_mul_u32_u24 v9, 110592, v9")
                A("v_lshl_add_u32 v9, v8, 9, v9")
                A("v_and_b32 v7, 31, v7")
                A("v_lshl_add_u32 v9, v7, 4, v9")
                A(f"v_add_u32 v{KD+n}, s53, v9")
            A("s_mul_i32 s53, s38, 3072")
            A("v_lshrrev_b32 v9, 2, v0")
            A("s_lshl_b32 s54, s38, 4")
            A("v_add_u32 v9, s54, v9")
            A("s_lshl_b32 s54, s50, 6")
            A("v_add_u32 v10, s54, v9")
            A("v_and_b32 v11, 3, v0")
            A("v_mul_u32_u24 v12, 36, v11")
            A(f"v_lshlrev_b32 v13, 4, v9")
            A(f"v_add_u32 v13, {KV + 32}, v13")
            A("s_movk_i32 s55, 1280")
            for d in range(9):
                A(f"v_add_u32 v14, {4*d}, v12")
                A("v_lshrrev_b32 v15, 4, v14")
                A(f"v_mad_u32_u24 v{AD+d}, v15, s55, v13")
                A("v_and_b32 v14, 15, v14")
                A(f"v_add_u32 v{AD+d}, v{AD+d}, v14")
            A("s_mov_b32 s56, 0xffff0000")
            A(f"v_mov_b32 v{TT+12}, {f32(C1)}")
            A.drain_lg()
        def prog(NB):
            A = Stream()
            A.nvm, A.vm_done, A.nlg, A.lg_done = base.nvm, base.vm_done, base.nlg, base.lg_done
            LL = lambda s_: L(f"{s_}_{NB}")
            tok = {}; ev = {}; Q = []
            def issueB(st, between=lambda: None):
                A(f"s_add_u32 m0, s41, {(st%4)*S3}")
                A(f"s_mov_b32 s43, {st*18432}")
                for p in range(4):
                    tok[st] = A.vm(f"buffer_load_dwordx4 v5, s[16:19], s43 offen offset:{p*1024} {LD} lds")
                    between()
                if NB == 5:
                    A(f"s_add_u32 m0, s41, {(st%4)*S3+4096}")
                    A(f"s_add_u32 s43, s43, 4096")
                    tok[st] = A.vm(f"buffer_load_dwordx4 v5, s[16:19], s43 offen {LD} lds")
            for st in range(4): issueB(st)
            att_setup(A)
            def q_dma():
                for n in range(3):
                    A(f"s_add_u32 s54, s38, {4*n}")
                    A("s_min_u32 s54, s54, 8")
                    A("s_mul_i32 s57, s54, 1280")
                    A(f"s_add_u32 m0, s57, {KV + KVSZ + 256}")
                    A("s_lshl_b32 s54, s54, 9")
                    A("s_add_u32 s54, s54, s52")
                    A.vm(f"buffer_load_dwordx4 v216, s[28:31], s54 offen {LD} lds")
            def kv_dma(x):
                A(f"s_add_u32 s54, s52, {x*72*512}")
                for n in range(3):
                    A(f"s_add_u32 m0, s53, {KV + (x-1)*KVSZ + n*1024}")
                    A("s_nop 0")
                    ev["kv"] = A.vm(f"buffer_load_dwordx4 v{KD+n}, s[28:31], s54 offen {LD} lds")
            R = lambda t: Q.append(lambda: A(t))
            def Rvm(nm, t): Q.append(lambda: ev.__setitem__(nm, A.vm(t)))
            def Rlg(nm, t): Q.append(lambda: ev.__setitem__(nm, A.lg(t)))
            def Rwl(nm): Q.append(lambda: A.wait_lg(ev[nm]))
            def gelu(g_):
                P = Z1 + 2 * g_
                X = [TT + r for r in range(4)]; U = [TT + 4 + r for r in range(4)]
                R(f"v_lshlrev_b32 v{X[0]}, 16, v{P}")
                R(f"v_and_b32 v{X[1]}, s56, v{P}")
                R(f"v_lshlrev_b32 v{X[2]}, 16, v{P+1}")
                R(f"v_and_b32 v{X[3]}, s56, v{P+1}")
                for r in range(4): R(f"v_mul_f32 v{U[r]}, v{X[r]}, v{X[r]}")
                for r in range(4): R(f"v_fmamk_f32 v{U[r]}, v{U[r]}, {f32(C2)}, v{TT+12}")
                for r in range(4): R(f"v_mul_f32 v{U[r]}, v{U[r]}, v{X[r]}")
                for r in range(4): R(f"v_exp_f32 v{U[r]}, v{U[r]}")
                for r in range(4): R(f"v_add_f32 v{U[r]}, 1.0, v{U[r]}")
                for r in range(4): R(f"v_rcp_f32 v{U[r]}, v{U[r]}")
                for r in range(4): R(f"v_mul_f32 v{X[r]}, v{X[r]}, v{U[r]}")
                R(f"v_cvt_pk_bf16_f32 v{P}, v{X[0]}, v{X[1]}")
                R(f"v_cvt_pk_bf16_f32 v{P+1}, v{X[2]}, v{X[3]}")
            def win_reads(base_):
                for w in range(8):
                    for d in range(9):
                        Rlg("win", f"ds_read_b32 v{KR+9*w+d}, v{AD+d} offset:{base_ + (14-2*w)*16}")
            gl = list(range(18))
            for _ in range(10): gelu(gl.pop(0))
            n_pre = len(Q)
            for d in range(9): Rlg("qr", f"ds_read_b32 v{QR+d}, v{AD+d} offset:{KVSZ + 224}")
            win_reads(0)
            Rwl("qr")
            for d in range(9):
                R(f"v_lshlrev_b32 v{QU+2*d}, 16, v{QR+d}")
                R(f"v_and_b32 v{QU+2*d+1}, s56, v{QR+d}")
            gelu(gl.pop(0))
            Rwl("win")
            for w in range(8):
                for d in range(9):
                    x = KR + 9 * w + d
                    t = TT + (d % 2) * 2
                    R(f"v_lshlrev_b32 v{t}, 16, v{x}")
                    R(f"v_and_b32 v{t+1}, s56, v{x}")
                    a_ = TT + 4 + (d % 2) * 2
                    op = "v_mul_f32" if d < 2 else "v_fmac_f32"
                    R(f"{op} v{a_}, v{t}, v{QU+2*d}")
                    R(f"{op} v{a_+1}, v{t+1}, v{QU+2*d+1}")
                R(f"v_add_f32 v{TT+4}, v{TT+4}, v{TT+5}")
                R(f"v_add_f32 v{TT+6}, v{TT+6}, v{TT+7}")
                R(f"v_add_f32 v{LG+w}, v{TT+4}, v{TT+6}")
            Q.append(lambda: ev.__setitem__("vread_k", ev["k"]))
            win_reads(KVSZ)
            sc = (18 ** -0.5) * 1.4426950408889634
            R(f"v_mov_b32 v{TT}, {f32(-1e9)}")
            for w in range(8): R(f"v_mul_f32 v{LG+w}, {f32(sc)}, v{LG+w}")
            for w in range(1, 8):
                def g(w=w):
                    A(f"v_cmp_gt_u32 vcc, {2*w}, v10")
                    A(f"v_cndmask_b32 v{LG+w}, v{LG+w}, v{TT}, vcc")
                Q.append(g)
            R(f"v_max3_f32 v{TT+1}, v{LG}, v{LG+1}, v{LG+2}")
            R(f"v_max3_f32 v{TT+2}, v{LG+3}, v{LG+4}, v{LG+5}")
            R(f"v_max3_f32 v{TT+1}, v{TT+1}, v{LG+6}, v{LG+7}")
            R(f"v_max_f32 v{TT+1}, v{TT+1}, v{TT+2}")
            for w in range(8): R(f"v_sub_f32 v{LG+w}, v{LG+w}, v{TT+1}")
            for w in range(8): R(f"v_exp_f32 v{LG+w}, v{LG+w}")
            R(f"v_add_f32 v{TT+1}, v{LG}, v{LG+1}")
            R(f"v_add_f32 v{TT+2}, v{LG+2}, v{LG+3}")
            R(f"v_add_f32 v{TT+3}, v{LG+4}, v{LG+5}")
            R(f"v_add_f32 v{TT+4}, v{LG+6}, v{LG+7}")
            R(f"v_add_f32 v{TT+1}, v{TT+1}, v{TT+2}")
            R(f"v_add_f32 v{TT+3}, v{TT+3}, v{TT+4}")
            R(f"v_add_f32 v{TT+1}, v{TT+1}, v{TT+3}")
            R(f"v_rcp_f32 v{TT+8}, v{TT+1}")
            gelu(gl.pop(0))
            Rwl("win")
            for w in range(8):
                for d in range(9):
                    x = KR + 9 * w + d
                    t = TT + (d % 2) * 2
                    R(f"v_lshlrev_b32 v{t}, 16, v{x}")
                    R(f"v_and_b32 v{t+1}, s56, v{x}")
                    op = "v_mul_f32" if w == 0 else "v_fmac_f32"
                    R(f"{op} v{OA+2*d}, v{t}, v{LG+w}")
                    R(f"{op} v{OA+2*d+1}, v{t+1}, v{LG+w}")
            for d in range(18): R(f"v_mul_f32 v{OA+d}, v{OA+d}, v{TT+8}")
            for s_ in ("s_lshl_b32 s54, s50, 2", "s_add_u32 s54, s54, s38", "s_mul_i32 s54, s54, 92160", "s_lshl_b32 s58, s51, 11",
                       "s_add_u32 s58, s58, s54", "s_lshr_b32 s59, s51, 2", "s_lshl_b32 s59, s59, 10", "s_add_u32 s54, s54, s59",
                       "s_and_b32 s59, s51, 3", "s_lshl_b32 s59, s59, 4", "s_add_u32 s54, s54, s59", "s_add_u32 s54, s54, 16384",
                       f"v_lshrrev_b32 v{QU}, 2, v0", f"v_lshlrev_b32 v{QU}, 6, v{QU}", f"v_lshl_add_u32 v{QU}, v11, 2, v{QU}"):
                R(s_)
            for d in range(9): R(f"v_cvt_pk_bf16_f32 v{KR+d}, v{OA+2*d}, v{OA+2*d+1}")
            Rvm("o", f"buffer_store_dwordx4 {v(KR,4)}, v6, s[24:27], s58 offen sc1")
            Rvm("o", f"buffer_store_dwordx4 {v(KR+4,4)}, v6, s[24:27], s58 offen offset:1024 sc1")
            Rvm("o", f"buffer_store_dword v{KR+8}, v{QU}, s[24:27], s54 offen sc1")
            Q.append(lambda: ev.__setitem__("o_k", ev["k"]))
            while gl: gelu(gl.pop(0))
            def run(n):
                for _ in range(n):
                    if Q: Q.pop(0)()
            A.wait_vm(tok[0])
            A("s_barrier")
            A.wait_vm(tok[1])
            A("s_barrier")
            K0 = opt.get('k0', 7)
            LAST = opt.get("last", 28)
            OK_ = opt.get("ok", 26)
            for k in range(N3):
                ev["k"] = k
                if k == 1 and NB == 5: flag_store(A, LL, "f1", 4, 0)
                if k == K0 - 3:
                    poll(A, LL, "pfa", "v6", 4, "0", 0, 220)
                    A.vm_done = A.nvm - 1
                    q_dma(); kv_dma(1)
                if k == K0 + 1: kv_dma(2)
                if k == OK_ + 1 and NB == 5: flag_store(A, LL, "fo", 4, 1024)
                if k < K0: nf = (n_pre * (k + 1)) // K0 - (n_pre * k) // K0
                else: nf = -(-len(Q) // (LAST - k + 1)) if k <= LAST else 0
                left = [nf]
                def bt(per=-(-nf // 8)):
                    n_ = min(per, left[0]); run(n_); left[0] -= n_
                if k + 4 < N3:
                    issueA(A, k + 4, bt); issueB(k + 4, bt)
                run(left[0])
                if k == 29:
                    A("s_mul_i32 s37, s38, 9216")
                    A("v_add_u32 v7, s37, v6")
                    for q_ in range(9): A.lg(f"ds_write_b128 v7, {v(Z1+4*q_,4)} offset:{q_*1024}")
                if k == 31:
                    ids4(A)
                    A("s_lshl_b32 s40, s32, 2")
                    A("s_add_u32 s40, s40, s38")
                    A(f"s_mul_i32 s41, s40, {90*1024}")
                    A("v_add_u32 v1, s41, v6")
                    A(f"s_mul_i32 s41, s33, {90*4608}")
                    A("s_lshl_b32 s40, s38, 11")
                    A("s_add_u32 s41, s41, s40")
                    A("v_add_u32 v2, s41, v6")
                    A("s_add_u32 s41, s40, 8192")
                    A("s_mov_b32 s42, 0")
                    A("s_mov_b32 s43, 0")
                    A(f"s_mov_b32 s57, {7*S4}")
                    srd(A, 16, 46, SZ_WP, WS_WP)
                    A("v_and_b32 v3, 7, v0")
                    A("v_lshlrev_b32 v3, 2, v3")
                    A("v_and_b32 v4, 15, v0")
                    A("v_lshlrev_b32 v4, 2, v4")
                    A("s_lshl_b32 s58, s32, 5")
                    poll(A, LL, "pfo", "v3", 1, "s58", 1024, 220)
                    A.vm_done = A.nvm - 1
                if k == 0: A.wait_vm(last_store)
                if k + 2 < N3: A.wait_vm(tok[k + 2])
                if k == K0 - 1: A.wait_vm(ev["kv"])
                if k == K0: A.wait_lg(ev.get("qr"))
                if k == K0 + 3:
                    A.wait_vm(ev["kv"]); assert "vread_k" not in ev
                if k == OK_:
                    assert ev["o_k"] < OK_ - 1, ev["o_k"]
                    A.wait_vm(ev["o"])
                if k == N3 - 1: A.drain_lg()
                A("s_barrier")
            return A
        outs = []
        for NB in (5, 4):
            A = prog(NB)
            outs.append(A)
            if NB == 5:
                A(f"s_branch {L('q4')}")
            else:
                A("s_cmp_eq_u32 s38, 3")
                A(f"s_cbranch_scc1 {L('q5')}")
        txt = outs[0].text() + L("ld4") + ":\n" + outs[1].text()
        B = Asm()
        for NL in (4, 5):
            B.label(L(f"q{NL}"))
            def issue():
                B("s_add_u32 m0, s40, s57")
                B("s_add_u32 s37, s41, s57")
                B(f"buffer_load_dwordx4 v1, s[24:27], s42 offen {LD} lds")
                B(f"buffer_load_dwordx4 v1, s[24:27], s42 offen offset:1024 {LD} lds")
                B("s_mov_b32 m0, s37")
                B("s_add_u32 s42, s42, 2048")
                B(f"buffer_load_dwordx4 v2, s[16:19], s43 offen {LD} lds")
                B(f"buffer_load_dwordx4 v2, s[16:19], s43 offen offset:1024 {LD} lds")
                if NL == 5: B(f"buffer_load_dwordx4 v2, s[16:19], s43 offen offset:2048 {LD} lds")
                B(f"s_add_u32 s43, s43, 9216")
                B(f"s_add_u32 s57, s57, {S4}")
                B(f"s_cmp_eq_u32 s57, {NS4*S4}")
                B("s_cselect_b32 s57, 0, s57")
            issue(); issue()
            B("s_barrier")
            B("s_barrier")
            B("s_barrier")
            for _ in range(7): issue()
            B(f"s_waitcnt vmcnt({NL*8})")
            B("s_barrier")
            B(f"s_waitcnt vmcnt({NL*7})")
            B("s_barrier")
            YW = opt.get("yw", 4)
            for k in range(7):
                if k == YW + 1 and NL == 4:
                    B("s_cmp_eq_u32 s34, 4")
                    B(f"s_cbranch_scc0 {L('fy')}")
                    B("s_lshl_b32 s68, s48, 4")
                    B("s_add_u32 s68, s68, s49")
                    B("s_lshl_b32 s68, s68, 2")
                    B("v_mov_b32 v254, s71")
                    B("s_mov_b64 exec, 1")
                    B("buffer_store_dword v254, off, s[72:75], s68 offset:2048 sc1")
                    B("s_mov_b64 exec, -1")
                    B.label(L("fy"))
                B(f"s_waitcnt vmcnt({NL*(6-k)})")
                B("s_barrier")
            B("s_lshr_b32 s58, s32, 1")
            B("s_lshl_b32 s58, s58, 6")
            poll(B, lambda s_: L(f"{s_}{NL}"), "pfy", "v4", 1, "s58", 2048, 220)
            for _ in range(8): issue()
            B(f"s_waitcnt vmcnt({NL*7})")
            B("s_barrier")
            B("s_mov_b32 s59, 0")
            B.label(L(f"lloop{NL}"))
            issue()
            B("s_add_u32 s59, s59, 1")
            B(f"s_cmp_lt_u32 s59, {N4 - 17}")
            B(f"s_waitcnt vmcnt({NL*7})")
            B("s_barrier")
            B(f"s_cbranch_scc1 {L(f'lloop{NL}')}")
            for k in range(36, N4):
                B(f"s_waitcnt vmcnt({NL*max(0, N4-1-(k+2))})")
                B("s_barrier")
            B("s_endpgm")
        A0.lines += (txt + B.text()).rstrip("\n").split("\n")

    def hook(j, A, ctx):
        if j == 0: compute(A, ctx)
        else: loaders(A, ctx)
    opt["mega"] = hook
    text, desc, launch = gen_k1(name, opt)
    return text, desc, launch
```

```python
import sys; sys.path.insert(0,"dev")
import gen
from mega import gen_mega
OUT="recurrent_scan__sliding_local_dilated__mixer_gmlp__prompt.s"
gen.build([gen_mega("mega_kernel")], OUT)
gen.build([gen_mega("mega_kernel", opt=dict(stamp=0))], "mega.s")
```

```python
import sys; sys.path.insert(0,"dev")
import gen
from mega2 import gen_mega
OUT="recurrent_scan__sliding_local_dilated__mixer_gmlp__prompt.s"
NAME="recurrent_scan__sliding_local_dilated__mixer_gmlp__prompt_kernel"
k=gen_mega(NAME)
txt=k[0].replace(NAME+"_","L_")
gen.build([(txt,k[1],"; @launch grid=(256,1,1) block=(512,1,1) lds=163840")], OUT)
gen.build([gen_mega("mega_kernel", opt=dict(stamp=0))], "mega.s")
```

```python
from asmlib import *
from layout import *
from p1 import gen_p1, f32, C1, C2, SPIN, HQ

S3 = 34816
N3 = 32
KV = 4 * S3
KVSZ = 12288
S4 = 17408
NS4 = 9
N4S, N4G = 9, 36
N4 = N4S + N4G
Z1 = 160
FQ = 3072 + 4096
FW = FQ + 2048
FYO = FW + 2048
SB4 = 2048
NAD = 163832

def gen_mega(name, opt=None):
    opt = dict(opt or {})
    st_ = opt.get("stamp", None)
    LD = opt.get("ld", "sc1")

    def zflag(A, L):
        srd(A, 40, 46, SZ_FLAG, WS_FLAG)
        A("s_lshl_b32 s63, s49, 4")
        A("s_add_u32 s63, s63, s48")
        A("s_lshl_b32 s63, s63, 2")
        A("s_add_u32 s63, s63, s51")
        A("s_lshl_b32 s63, s63, 2")
        A("v_mov_b32 v13, s71")
        A("s_mov_b64 exec, 1")
        A.vm("buffer_store_dword v13, off, s[40:43], s63 offset:3072 sc1")
        A("s_mov_b64 exec, -1")
    opt["zflag"] = zflag

    def flag_store(A, L, tag, wave, off):
        A(f"s_cmp_eq_u32 s34, {wave}")
        A(f"s_cbranch_scc0 {L(tag)}")
        A("s_lshl_b32 s68, s2, 2")
        A("v_mov_b32 v254, s71")
        A("s_mov_b64 exec, 1")
        A.vm_opt(f"buffer_store_dword v254, off, s[72:75], s68 offset:{off} sc1")
        A("s_mov_b64 exec, -1")
        A.label(L(tag))

    def poll(A, L, tag, vaddr, n, soff, off, tmp, sleep=2):
        A("s_mov_b32 s69, 0")
        A.label(L(tag))
        A(f"buffer_load_dword{'x4' if n == 4 else ''} {v(tmp,n)}, {vaddr}, s[72:75], {soff} offen offset:{off} sc1")
        A("s_add_u32 s69, s69, 1")
        A(f"s_cmp_gt_u32 s69, {SPIN}")
        A(f"s_cbranch_scc1 {L(tag + 'ok')}")
        A("s_waitcnt vmcnt(0)")
        for q in range(n): A(f"v_xor_b32 v{tmp+q}, s71, v{tmp+q}")
        if n == 4:
            A(f"v_or_b32 v{tmp}, v{tmp}, v{tmp+1}")
            A(f"v_or3_b32 v{tmp}, v{tmp}, v{tmp+2}, v{tmp+3}")
        A(f"v_cmp_ne_u32 vcc, 0, v{tmp}")
        A("s_nop 4")
        A(f"s_cbranch_vccz {L(tag + 'ok')}")
        if sleep: A(f"s_sleep {sleep}")
        A(f"s_branch {L(tag)}")
        A.label(L(tag + "ok"))

    def poll_pipe(A, L, tag, vaddr, soff, off, tmp, depth):
        ld = lambda q: f"buffer_load_dword v{tmp+q}, {vaddr}, s[72:75], {soff} offen offset:{off} sc1"
        A("s_waitcnt vmcnt(0)")
        A("s_mov_b32 s69, 0")
        for q in range(depth):
            A(ld(q))
            if q < depth - 1: A(f"s_sleep {opt.get('pgap', 6)}")
        A.label(L(tag))
        for q in range(depth):
            A(f"s_waitcnt vmcnt({depth-1})")
            A(f"v_cmp_ne_u32 vcc, s71, v{tmp+q}")
            A("s_nop 4")
            A(f"s_cbranch_vccz {L(tag + 'ok')}")
            A(ld(q))
        A("s_add_u32 s69, s69, 1")
        A(f"s_cmp_gt_u32 s69, {SPIN}")
        A(f"s_cbranch_scc0 {L(tag)}")
        A.label(L(tag + "ok"))

    def poll_issue(A, vaddr, n, soff, off, tmp):
        return A.vm(f"buffer_load_dword{'x4' if n == 4 else ''} {v(tmp,n)}, {vaddr}, s[72:75], {soff} offen offset:{off} sc1")
    def poll_check(A, L, tag, tok, vaddr, n, soff, off, tmp):
        A.wait_vm(tok)
        for q in range(n): A(f"v_xor_b32 v{tmp+q}, s71, v{tmp+q}")
        if n == 4:
            A(f"v_or_b32 v{tmp}, v{tmp}, v{tmp+1}")
            A(f"v_or3_b32 v{tmp}, v{tmp}, v{tmp+2}, v{tmp+3}")
        A(f"v_cmp_ne_u32 vcc, 0, v{tmp}")
        A("s_nop 4")
        A(f"s_cbranch_vccz {L(tag + 'ok')}")
        poll(A, L, tag, vaddr, n, soff, off, tmp)

    def flag_store2(A, L, tag, off1, sreg_hi, sreg_lo, off2):
        A("s_cmp_eq_u32 s34, 4")
        A(f"s_cbranch_scc0 {L(tag)}")
        A(f"s_lshl_b32 s68, {sreg_hi}, 7")
        A(f"s_lshl_b32 s69, {sreg_lo}, 2")
        A("s_add_u32 s68, s68, s69")
        A(f"s_add_u32 s68, s68, {off2}")
        A("v_mov_b32 v253, s68")
        if off1 is not None:
            A("s_lshl_b32 s69, s2, 2")
            A(f"s_add_u32 s69, s69, {off1}")
            A("v_writelane_b32 v253, s69, 1")
        A("v_mov_b32 v254, s71")
        A(f"s_mov_b64 exec, {3 if off1 is not None else 1}")
        A.vm_opt("buffer_store_dword v254, v253, s[72:75], 0 offen sc1")
        A("s_mov_b64 exec, -1")
        A.label(L(tag))

    def common(A):
        A("s_mov_b32 s32, s48")
        A("s_mov_b32 s33, s49")
        A("s_mov_b32 s34, s50")
        srd(A, 72, 46, SZ_FLAG, WS_FLAG)

    def compute(A, L):
        A("s_load_dwordx2 s[12:13], s[0:1], 48")
        if opt.get("cw", 1): opt["code_warm"](A, 248, 4)
        common(A)
        ACC = 184; FS = [8, 96]
        acc = lambda a_, f: ACC + (a_ * 9 + f) * 4
        Wf = lambda st, c, a_: FS[st] + c * 44 + a_ * 4
        Zf = lambda st, c, f: FS[st] + c * 44 + 8 + f * 4
        A("s_and_b32 s38, s34, 1")
        A("s_lshr_b32 s39, s34, 1")
        A("v_and_b32 v1, 15, v0")
        A("s_lshl_b32 s40, s32, 7")
        A("s_lshl_b32 s41, s34, 5")
        A("s_add_u32 s40, s40, s41")
        A("v_add_u32 v7, s40, v1")
        A("v_lshlrev_b32 v7, 1, v7")
        A("v_lshrrev_b32 v3, 4, v0")
        A("v_and_b32 v4, 7, v0")
        A("v_xor_b32 v3, v3, v4")
        A("v_lshlrev_b32 v3, 4, v3")
        A("v_lshlrev_b32 v4, 7, v1")
        A("v_add_u32 v3, v3, v4")
        A("s_lshl_b32 s41, s34, 12")
        A("v_add_u32 v1, s41, v3")
        A("v_xor_b32 v2, 64, v1")
        A("v_and_b32 v8, 3, v0")
        A("v_lshlrev_b32 v3, 8, v8")
        A("v_bfe_u32 v9, v0, 4, 1")
        A("v_lshl_add_u32 v3, v9, 7, v3")
        A("v_bfe_u32 v9, v0, 2, 2")
        A("v_lshl_add_u32 v3, v9, 4, v3")
        A("v_and_b32 v9, 1, v0")
        A("v_lshl_add_u32 v3, v9, 6, v3")
        A("v_lshrrev_b32 v9, 5, v0")
        A("v_lshrrev_b32 v8, 1, v8")
        A("v_xor_b32 v9, v9, v8")
        A("v_lshl_add_u32 v3, v9, 3, v3")
        A("v_add_u32 v3, 16384, v3")
        A("v_xor_b32 v4, 64, v3")
        A("s_waitcnt lgkmcnt(0)")
        srd(A, 24, 46, SZ_YC, WS_YC)
        srd(A, 28, 12, S * 2)
        A("buffer_load_ushort v5, v7, s[28:31], 0 offen")
        A("buffer_load_ushort v6, v7, s[28:31], 0 offen offset:32")
        def reads(st, slot):
            out = []
            so = (slot & 1) * S3
            for c in range(2):
                for f in range(9):
                    out.append(f"ds_read_b64_tr_b16 {v(Zf(st,c,f),2)}, v3 offset:{so + (c*9+f)*1024}")
                    out.append(f"ds_read_b64_tr_b16 {v(Zf(st,c,f)+2,2)}, v4 offset:{so + (c*9+f)*1024}")
                    if f == 0:
                        for a_ in range(2): out.append(f"ds_read_b128 {v(Wf(st,c,a_),4)}, v{1+c} offset:{so + a_*2048}")
            return out
        def body(u, first=False, cmp=None):
            st = u & 1
            if u & 1:
                for r in range(1, 5):
                    A(f"v_add_u32 v{r}, {2*S3}, v{r}" if u == 1 else f"v_subrev_u32 v{r}, {2*S3}, v{r}")
            rd = reads(st ^ 1, (u + 1) & 3)
            n = 0
            for c in range(2):
                for f in range(9):
                    for a_ in range(2):
                        cc = "0" if (first and c == 0) else v(acc(a_, f), 4)
                        A(f"v_mfma_f32_16x16x32_bf16 {v(acc(a_,f),4)}, {v(Zf(st,c,f),4)}, {v(Wf(st,c,a_),4)}, {cc}")
                        for _ in range(2 if n % 4 == 0 else 1):
                            if rd: A(rd.pop(0))
                        n += 1
            assert not rd
            if cmp and not opt.get("trace3"):
                A("s_add_u32 s43, s43, 1")
                A(f"s_cmp_lt_u32 s43, {cmp}")
            if opt.get("trace3"):
                A("s_memtime s[100:101]")
            A("s_waitcnt lgkmcnt(0)")
            if opt.get("trace3"):
                A("s_mov_b32 m0, s99")
                A("s_add_u32 s98, s99, 1")
                A("v_writelane_b32 v7, s100, m0")
            A("s_barrier")
            if opt.get("trace3"):
                A("s_memtime s[100:101]")
                A("s_waitcnt lgkmcnt(0)")
                A("s_or_b32 m0, s99, 32")
                A("s_mov_b32 s99, s98")
                A("v_writelane_b32 v7, s100, m0")
        if opt.get("trace3"): A("s_mov_b32 s99, 0")
        A("s_barrier")
        for r in reads(0, 0): A(r)
        A("s_waitcnt vmcnt(2) lgkmcnt(0)")
        A("s_barrier")
        A("s_mov_b32 s43, 0")
        if st_ is not None: stamp(A, 84)
        body(0, first=True)
        A(f"s_branch {L('c1')}")
        A.raw(".p2align 6")
        A.label(L("cloop"))
        body(0)
        A.label(L("c1"))
        body(1); body(2); body(3, cmp=N3 // 4)
        if opt.get("trace3"): A("s_cmp_lt_u32 s99, 32")
        A(f"s_cbranch_scc1 {L('cloop')}")
        if opt.get("trace3"):
            srd(A, 92, 46, 1 << 20, WS_DIAG + (1 << 20))
            A("s_lshl_b32 s100, s2, 3"); A("s_add_u32 s100, s100, s34"); A("s_lshl_b32 s100, s100, 8")
            A("v_lshlrev_b32 v1, 2, v0")
            A("buffer_store_dword v7, v1, s[92:95], s100 offen")
        if st_ is not None: stamp(A, 86)
        A("v_lshlrev_b32 v7, 4, v0")
        A("s_mul_i32 s42, s34, 9216")
        A("v_add_u32 v1, s42, v7")
        ZZ = 96
        A(f"v_mov_b32 v2, {NAD}")
        A("ds_read_b32 v2, v2")
        for f in range(9): A(f"ds_read_b128 {v(ZZ+4*f,4)}, v1 offset:{f*1024}")
        A("s_lshl_b32 s49, s32, 4")
        A("s_add_u32 s49, s49, s33")
        A("s_lshl_b32 s49, s49, 2")
        A("s_add_u32 s49, s49, s34")
        A("s_lshl_b32 s49, s49, 2")
        A(f"s_add_u32 s49, s49, {FYO}")
        A("s_lshl_b32 s36, s32, 3")
        A("s_lshl_b32 s37, s34, 1")
        A("s_add_u32 s36, s36, s37")
        A("s_mul_i32 s36, s36, 90")
        A("s_add_u32 s36, s36, 18")
        A("s_lshl_b32 s36, s36, 10")
        A("s_lshl_b32 s44, s33, 12")
        A("s_add_u32 s44, s44, s36")
        A("s_lshl_b32 s45, s33, 9")
        A("s_add_u32 s45, s45, s36")
        A("s_add_u32 s45, s45, 0x10000")
        A("v_add_u32 v3, s44, v7")
        A("v_lshlrev_b32 v4, 3, v0")
        A("v_add_u32 v4, s45, v4")
        A("s_mov_b32 s48, 0xffff0000")
        A(f"s_mov_b32 s37, {90*1024}")
        A("s_waitcnt vmcnt(0)")
        A("v_lshlrev_b32 v5, 16, v5")
        A("v_lshlrev_b32 v6, 16, v6")
        n = 0
        for f in range(9):
            for a_ in range(2):
                c = acc(a_, f)
                t = 8 + (n % 2) * 4
                o_ = 16 + ((f // 2) * 2 + a_) * 4 + (f % 2) * 2
                z = ZZ + 4 * f + 2 * a_
                for r in range(4): A(f"v_add_f32 v{c+r}, v{5+a_}, v{c+r}")
                if a_ == 0: A(f"s_waitcnt lgkmcnt({8-f})")
                A(f"v_lshlrev_b32 v{t}, 16, v{z}")
                A(f"v_and_b32 v{t+1}, s48, v{z}")
                A(f"v_lshlrev_b32 v{t+2}, 16, v{z+1}")
                A(f"v_and_b32 v{t+3}, s48, v{z+1}")
                for r in range(4): A(f"v_mul_f32 v{c+r}, v{c+r}, v{t+r}")
                A(f"v_cvt_pk_bf16_f32 v{o_}, v{c}, v{c+1}")
                A(f"v_cvt_pk_bf16_f32 v{o_+1}, v{c+2}, v{c+3}")
                so_ = "s37" if a_ else "0"
                if f % 2 == 1:
                    A(f"buffer_store_dwordx4 {v(o_-2,4)}, v3, s[24:27], {so_} offen offset:{(f//2)*1024} sc1")
                elif f == 8:
                    A(f"buffer_store_dwordx2 {v(o_,2)}, v4, s[24:27], {so_} offen sc1")
                n += 1
        A("v_mov_b32 v158, v2")
        A.label(L("p3"))
        if opt.get("st2"): stamp(A, 82)
        ids4(A)
        YF, WF4 = [160, 188], [168, 196]
        ACS, ACG = 64, 104
        XR = 144
        A("s_lshl_b32 s40, s32, 6")
        A("s_lshl_b32 s41, s38, 5")
        A("s_add_u32 s40, s40, s41")
        A("s_lshl_b32 s41, s39, 4")
        A("s_add_u32 s40, s40, s41")
        A("v_and_b32 v1, 15, v0")
        A("v_add_u32 v1, s40, v1")
        A("v_mul_u32_u24 v1, 1152, v1")
        A("v_lshrrev_b32 v2, 4, v0")
        A("v_lshlrev_b32 v3, 3, v2")
        A("s_mul_i32 s41, s33, 144")
        A("v_add3_u32 v7, v1, v3, s41")
        A("s_mul_i32 s41, s39, 4608")
        A("s_add_u32 s41, s41, 8192")
        A("v_lshlrev_b32 v3, 7, v2")
        A("v_and_b32 v4, 7, v0")
        A("v_lshl_add_u32 v3, v4, 4, v3")
        A("v_add_u32 v3, s41, v3")
        A("v_lshlrev_b32 v1, 4, v0")
        A("v_add_u32 v2, s41, v1")
        A("s_lshl_b32 s40, s38, 2")
        A("s_add_u32 s40, s40, s39")
        A("s_lshl_b32 s40, s40, 10")
        A("v_add_u32 v156, s40, v1")
        A("v_lshlrev_b32 v157, 3, v0")
        A("v_add_u32 v157, s40, v157")
        A("v_and_b32 v1, 15, v0")
        A("v_lshlrev_b32 v1, 6, v1")
        A("v_lshrrev_b32 v4, 4, v0")
        A("v_lshl_add_u32 v1, v4, 4, v1")
        A("v_add_u32 v1, s40, v1")
        srd(A, 12, 4, S * D * 2)
        srd(A, 16, 78, S * D * 2)
        A(f"s_mov_b32 s42, {SB4 + 2*S4}")
        A("s_mov_b32 s43, 0")
        def reads4(st, split=False):
            o = [f"ds_read_b128 {v(YF[st],4)}, v4", f"ds_read_b128 {v(WF4[st],4)}, v5", f"ds_read_b128 {v(YF[st]+4,4)}, v4 offset:2048"]
            if split:
                o[0] = f"ds_read2st64_b64 {v(YF[st],4)}, v4 offset0:0 offset1:1"
                o[2] = f"ds_read2st64_b64 {v(YF[st]+4,4)}, v4 offset0:4 offset1:5"
            for dt in range(1, 4): o.append(f"ds_read_b128 {v(WF4[st]+4*dt,4)}, v5 offset:{dt*1024}")
            o.append(f"ds_read_b128 {v(WF4[st]+16,4)}, v6 offset:4096")
            return o
        def addr():
            A("v_add_u32 v4, s42, v1")
            A("v_add_u32 v5, s42, v2")
            A("v_add_u32 v6, s42, v3")
            A(f"s_add_u32 s42, s42, {S4}")
            A(f"s_cmp_eq_u32 s42, {SB4 + NS4*S4}")
            A(f"s_cselect_b32 s42, {SB4}, s42")
        def body4(ACC_, st, cmp=None, first=False, pre=None, split=False):
            rd = reads4(st ^ 1, split)
            n = 0
            for dt in range(5):
                for a_ in range(2):
                    c = ACC_ + (a_ * 5 + dt) * 4
                    if rd: A(rd.pop(0))
                    A(f"v_mfma_f32_16x16x32_bf16 {v(c,4)}, {v(WF4[st]+4*dt,4)}, {v(YF[st]+4*a_,4)}, {'0' if first else v(c,4)}")
                    n += 1
                    if n == 8:
                        addr()
                        if cmp:
                            A("s_add_u32 s43, s43, 1")
                            A(f"s_cmp_lt_u32 s43, {cmp}")
            A("s_waitcnt lgkmcnt(0)" if not pre else pre)
            if pre:
                A("s_mov_b64 exec, 1")
                A("buffer_store_dword v158, off, s[72:75], s49 sc1")
                A("s_mov_b64 exec, -1")
            A("s_barrier")
        addr()
        A("s_barrier")
        for r in reads4(0): A(r)
        addr()
        A("s_waitcnt lgkmcnt(0)")
        A("s_barrier")
        YW = opt.get("yw", 3)
        for k in range(9):
            if k == 6: A("v_mov_b32 v1, v156")
            body4(ACS, k & 1, first=(k == 0), pre=("s_waitcnt vmcnt(0) lgkmcnt(0)" if k == YW else None))
            if k == 7 and opt.get("one", 0): A("s_barrier")
            if k == YW:
                if opt.get("st2"): stamp(A, 98)
                for dt in range(5):
                    A(f"buffer_load_dwordx2 {v(XR+2*dt,2)}, v7, s[12:15], 0 offen offset:{dt*32}")
        if st_ is not None: stamp(A, 96)
        body4(ACG, 1, first=True)
        A(f"s_branch {L('g1')}")
        A.label(L("gloop"))
        body4(ACG, 1)
        A.label(L("g1"))
        body4(ACG, 0, 15)
        A(f"s_cbranch_scc1 {L('gloop')}")
        A("v_mov_b32 v1, v157")
        body4(ACG, 1)
        for k in range(40, 45):
            body4(ACG, k & 1, split=True)
        if st_ is not None and not opt.get("st2"): stamp(A, 98)
        A("s_mul_i32 s40, s34, 10240")
        A("v_lshlrev_b32 v1, 4, v0")
        A("v_add_u32 v2, s40, v1")
        A("s_xor_b32 s41, s34, 2")
        A("s_mul_i32 s41, s41, 10240")
        A("v_add_u32 v3, s41, v1")
        A("s_cmp_eq_u32 s39, 0")
        A(f"s_cbranch_scc0 {L('h1')}")
        for jj in range(2):
            if jj == 1: A.label(L("h1"))
            A("s_nop 4")
            keep, send = jj, 1 - jj
            n = 0
            for ACC_ in (ACG, ACS):
                for dt in range(5):
                    A(f"ds_write_b128 v2, {v(ACC_+(send*5+dt)*4,4)} offset:{n*1024}")
                    n += 1
            A("s_waitcnt lgkmcnt(0)")
            A("s_barrier")
            P = 8
            for n in range(10): A(f"ds_read_b128 {v(P+4*n,4)}, v3 offset:{n*1024}")
            A("s_mov_b32 s40, 0xbfb8aa3b")
            A("s_mov_b32 s41, 0xffff0000")
            T = 48
            for dt in range(5):
                cg = ACG + (keep * 5 + dt) * 4
                A(f"s_waitcnt lgkmcnt({9-dt})")
                for r in range(4): A(f"v_add_f32 v{cg+r}, v{cg+r}, v{P+4*dt+r}")
                t = ACG + (send * 5 + dt) * 4
                for r in range(4): A(f"v_mul_f32 v{t+r}, s40, v{cg+r}")
                for r in range(4): A(f"v_exp_f32 v{t+r}, v{t+r}")
                for r in range(4): A(f"v_add_f32 v{t+r}, 1.0, v{t+r}")
                for r in range(4): A(f"v_rcp_f32 v{t+r}, v{t+r}")
            A("s_waitcnt vmcnt(0) lgkmcnt(0)")
            for dt in range(5):
                cs = ACS + (keep * 5 + dt) * 4
                cg = ACG + (keep * 5 + dt) * 4
                t = ACG + (send * 5 + dt) * 4
                for r in range(4): A(f"v_add_f32 v{cs+r}, v{cs+r}, v{P+20+4*dt+r}")
                A(f"v_lshlrev_b32 v{T+4}, 16, v{XR+2*dt}")
                A(f"v_and_b32 v{T+5}, s41, v{XR+2*dt}")
                A(f"v_lshlrev_b32 v{T+6}, 16, v{XR+2*dt+1}")
                A(f"v_and_b32 v{T+7}, s41, v{XR+2*dt+1}")
                for r in range(4): A(f"v_mul_f32 v{t+r}, v{t+r}, v{cg+r}")
                for r in range(4): A(f"v_fma_f32 v{t+r}, v{t+r}, v{cs+r}, v{T+4+r}")
                A(f"v_cvt_pk_bf16_f32 v{XR+2*dt}, v{t}, v{t+1}")
                A(f"v_cvt_pk_bf16_f32 v{XR+2*dt+1}, v{t+2}, v{t+3}")
                if dt == 4: A("s_mov_b32 exec_hi, 0")
                A(f"buffer_store_dwordx2 {v(XR+2*dt,2)}, v7, s[16:19], 0 offen offset:{dt*32}")
            if st_ is not None and jj == 0:
                A("s_mov_b64 exec, -1")
                A("s_cmp_eq_u32 s34, 0")
                A(f"s_cbranch_scc0 {L('end')}")
                if opt.get("dbgst"):
                    A("s_waitcnt vmcnt(0) lgkmcnt(0)")
                    A("s_memrealtime s[90:91]")
                    A("s_load_dwordx2 s[4:5], s[0:1], 72")
                    A("s_waitcnt lgkmcnt(0)")
                    A("s_cmp_eq_u32 s2, 5")
                    A(f"s_cbranch_scc0 {L('end')}")
                    srd(A, 92, 4, 256)
                    for q_, r_ in enumerate([82, 88, 84, 86, 96, 98, 90]):
                        A(f"s_sub_u32 s{r_}, s{r_}, s80")
                        A(f"v_mov_b32 v1, s{r_}")
                        A(f"buffer_store_dword v1, off, s[92:95], 0 offset:{16+q_*4}")
                    A("s_endpgm")
                stamp_store(A, 46, st_, [80, 88, 84, 86, 82, 98, 96, 90] if opt.get('st2') else [80, 82, 88, 84, 86, 96, 98, 90], 92)
            A("s_endpgm")

    def ids4(A):
        A("s_and_b32 s40, s2, 7")
        A("s_lshr_b32 s41, s2, 3")
        A("s_lshr_b32 s32, s40, 1")
        A("s_lshl_b32 s32, s32, 3")
        A("s_lshr_b32 s42, s41, 2")
        A("s_add_u32 s32, s32, s42")
        A("s_and_b32 s33, s40, 1")
        A("s_lshl_b32 s33, s33, 2")
        A("s_and_b32 s42, s41, 3")
        A("s_add_u32 s33, s33, s42")

    def loaders(A, L, LL, big, ctx):
        NB = 5 if big else 4
        rst = ctx["repack_store"]()
        common(A)
        A("s_sub_u32 s38, s34, 4")
        A("v_lshrrev_b32 v5, 3, v0")
        A("v_and_b32 v6, 7, v0")
        A("v_xor_b32 v6, v6, v5")
        A("v_lshlrev_b32 v6, 4, v6")
        A("s_lshl_b32 s40, s32, 7")
        A("s_lshl_b32 s41, s38, 5")
        A("s_add_u32 s40, s40, s41")
        A("v_add_u32 v5, s40, v5")
        A("v_lshlrev_b32 v5, 12, v5")
        A("v_add_u32 v1, v5, v6")
        for p in range(1, 4): A(f"v_add_u32 v{1+p}, {p*(32768-1024)}, v1")
        A("s_mul_i32 s41, s38, 5")
        A("s_cmp_eq_u32 s38, 3")
        A("s_cselect_b32 s41, 14, s41")
        A("s_lshl_b32 s41, s41, 10")
        A("v_lshlrev_b32 v6, 4, v0")
        A("v_add_u32 v5, s41, v6")
        A("s_lshl_b32 s40, s38, 12")
        A("s_add_u32 s41, s41, 16384")
        srd(A, 12, 10, S * S * 2)
        A(f"s_mul_i32 s37, s33, {N3 * 18432}")
        A(f"s_add_u32 s16, s46, s37")
        A(f"s_addc_u32 s17, s47, 0")
        A(f"s_mov_b32 s18, {N3 * 18432}")
        A("s_mov_b32 s19, 0x00020000")
        def issueA(A, st, between=lambda: None):
            A(f"s_add_u32 m0, s40, {(st%4)*S3}")
            A(f"s_movk_i32 s42, {st*128}")
            for p in range(4):
                A.vm(f"buffer_load_dwordx4 v{1+p}, s[12:15], s42 offen offset:{p*1024} lds")
                between()
        srd(A, 24, 46, SZ_YC, WS_YC)
        srd(A, 28, 46, SZ_QKV, WS_QKV)
        for st in range(4): issueA(A, st)
        A("v_lshlrev_b32 v7, 2, v0")
        A("s_lshl_b32 s57, s33, 8")
        poll(A, LL, "pf1", "v7", 1, "s57", 3072, 244)
        A.vm_done = A.nvm - 1
        QR, KR, LG, OA, TT, QU, AD, KD = 16, 28, 100, 108, 126, 140, 204, 213
        QK = 40
        if True:
            tok = {}; ev = {}; Q = []
            def issueB(st, between=lambda: None):
                A(f"s_add_u32 m0, s41, {(st%4)*S3}")
                A(f"s_mov_b32 s43, {st*18432}")
                for p in range(4):
                    tok[st] = A.vm(f"buffer_load_dwordx4 v5, s[16:19], s43 offen offset:{p*1024} {LD} lds")
                    between()
                if NB == 5:
                    A(f"s_add_u32 m0, s41, {(st%4)*S3+4096}")
                    A(f"s_add_u32 s43, s43, 4096")
                    tok[st] = A.vm(f"buffer_load_dwordx4 v5, s[16:19], s43 offen {LD} lds")
            for st in range(3): issueB(st)
            A("s_lshr_b32 s50, s2, 3")
            A("s_and_b32 s51, s2, 7")
            A("s_mul_i32 s52, s51, 4608")
            A("s_lshl_b32 s53, s50, 1")
            A("s_mul_i32 s53, s53, 110592")
            A("v_lshrrev_b32 v216, 5, v0")
            A("v_mul_u32_u24 v216, 110592, v216")
            A("v_and_b32 v8, 31, v0")
            A("v_lshl_add_u32 v216, v8, 4, v216")
            A("v_add_u32 v216, s53, v216")
            A("s_mul_i32 s54, s38, 192")
            A("s_sub_u32 s53, s53, 110592")
            for n in range(3):
                A(f"v_add_u32 v7, s54, v0")
                if n: A(f"v_add_u32 v7, {64*n}, v7")
                A("v_mul_u32_u24 v8, 820, v7")
                A("v_lshrrev_b32 v8, 16, v8")
                A("v_mul_u32_u24 v9, 80, v8")
                A("v_sub_u32 v7, v7, v9")
                A("v_add_u32 v7, 16, v7")
                A("v_lshrrev_b32 v9, 5, v7")
                A("v_mul_u32_u24 v9, 110592, v9")
                A("v_lshl_add_u32 v9, v8, 9, v9")
                A("v_and_b32 v7, 31, v7")
                A("v_lshl_add_u32 v9, v7, 4, v9")
                A(f"v_add_u32 v{KD+n}, s53, v9")
            A("s_mul_i32 s53, s38, 3072")
            A("v_lshrrev_b32 v9, 2, v0")
            A("s_lshl_b32 s54, s38, 4")
            A("v_add_u32 v9, s54, v9")
            A("s_lshl_b32 s54, s50, 6")
            A("v_add_u32 v10, s54, v9")
            A("v_and_b32 v11, 3, v0")
            A("v_mul_u32_u24 v12, 36, v11")
            A(f"v_lshlrev_b32 v13, 4, v9")
            A(f"v_add_u32 v13, {KV + 32}, v13")
            A("s_movk_i32 s55, 1280")
            for d in range(9):
                A(f"v_add_u32 v14, {4*d}, v12")
                A("v_lshrrev_b32 v15, 4, v14")
                A(f"v_mad_u32_u24 v{AD+d}, v15, s55, v13")
                A("v_and_b32 v14, 15, v14")
                A(f"v_add_u32 v{AD+d}, v{AD+d}, v14")
            A("s_mov_b32 s56, 0xffff0000")
            A(f"v_mov_b32 v{TT+12}, {f32(C1)}")
            A("s_lshr_b32 s54, s50, 1")
            A("s_lshl_b32 s54, s54, 7")
            A("s_max_u32 s57, s50, 1")
            A("s_sub_u32 s57, s57, 1")
            A("s_lshr_b32 s57, s57, 1")
            A("s_lshl_b32 s57, s57, 7")
            A("v_mov_b32 v248, s54")
            A("v_mov_b32 v249, s57")
            A("v_cmp_lt_u32 vcc, 31, v0")
            A("v_cndmask_b32 v248, v248, v249, vcc")
            A("v_and_b32 v249, 15, v0")
            A("v_lshl_add_u32 v248, v249, 2, v248")
            A(f"v_add_u32 v248, {FQ}, v248")
            def q_dma():
                for n in range(3):
                    A(f"s_add_u32 s54, s38, {4*n}")
                    A("s_min_u32 s54, s54, 8")
                    A("s_mul_i32 s57, s54, 1280")
                    A(f"s_add_u32 m0, s57, {KV + KVSZ + 256}")
                    A("s_lshl_b32 s54, s54, 9")
                    A("s_add_u32 s54, s54, s52")
                    ev["qd"] = A.vm(f"buffer_load_dwordx4 v216, s[28:31], s54 offen {LD} lds")
            def kv_dma(x):
                A(f"s_add_u32 s54, s52, {x*72*512}")
                for n in range(3):
                    A(f"s_add_u32 m0, s53, {KV + (x-1)*KVSZ + n*1024}")
                    A("s_nop 0")
                    ev["kv"] = A.vm(f"buffer_load_dwordx4 v{KD+n}, s[28:31], s54 offen {LD} lds")
            def cost_of(t): return opt.get("dotw", 2.7) if t.startswith("v_dot") else (2 if t.startswith(("v_exp", "v_rcp")) else (1 if t.startswith("v_") else 0.3))
            R = lambda t: Q.append((lambda: A(t), cost_of(t)))
            def Rvm(nm, t): Q.append((lambda: ev.__setitem__(nm, A.vm(t)), 4))
            def Rlg(nm, t): Q.append((lambda: ev.__setitem__(nm, A.lg(t)), 1.5))
            def Rwl(nm): Q.append((lambda: A.wait_lg(ev[nm]), 0.3))
            def gelu(g_):
                P = Z1 + 2 * g_
                X = [TT + r for r in range(4)]; U = [TT + 4 + r for r in range(4)]
                R(f"v_lshlrev_b32 v{X[0]}, 16, v{P}")
                R(f"v_and_b32 v{X[1]}, s56, v{P}")
                R(f"v_lshlrev_b32 v{X[2]}, 16, v{P+1}")
                R(f"v_and_b32 v{X[3]}, s56, v{P+1}")
                for r in range(4): R(f"v_mul_f32 v{U[r]}, v{X[r]}, v{X[r]}")
                for r in range(4): R(f"v_fmamk_f32 v{U[r]}, v{U[r]}, {f32(C2)}, v{TT+12}")
                for r in range(4): R(f"v_mul_f32 v{U[r]}, v{U[r]}, v{X[r]}")
                for r in range(4): R(f"v_exp_f32 v{U[r]}, v{U[r]}")
                for r in range(4): R(f"v_add_f32 v{U[r]}, 1.0, v{U[r]}")
                for r in range(4): R(f"v_rcp_f32 v{U[r]}, v{U[r]}")
                for r in range(4): R(f"v_mul_f32 v{X[r]}, v{X[r]}, v{U[r]}")
                R(f"v_cvt_pk_bf16_f32 v{P}, v{X[0]}, v{X[1]}")
                R(f"v_cvt_pk_bf16_f32 v{P+1}, v{X[2]}, v{X[3]}")
            vphase = [False]
            def win_reads(wp):
                for d in range(9):
                    Rlg(f"{'win' if vphase[0] else 'kwin'}{wp}", f"ds_read2_b32 {v(KR+(wp*9+d)*2,2)}, v{AD+d} offset0:{(14-4*wp)*4} offset1:{(12-4*wp)*4}")
            ST2 = [(lambda s_=s_: ev.__setitem__("st2", A.vm(s_))) for s_ in rst]
            GG = []
            for g_ in range(18):
                gelu(g_); GG.append(Q[:]); del Q[:]
            for d in range(9): Rlg("qr", f"ds_read_b32 v{QR+d}, v{AD+d} offset:{KVSZ + 224}")
            Q.extend(GG.pop())
            Rwl("qr")
            for d in range(9):
                R(f"v_lshlrev_b32 v{QU+2*d}, 16, v{QR+d}")
                R(f"v_and_b32 v{QU+2*d+1}, s56, v{QR+d}")
            Q.append((lambda: ev.__setitem__("kread_k", ev["k"]), 0))
            win_reads(0); win_reads(1)
            for w in range(8):
                if w in (1, 3): win_reads(w // 2 + 2)
                if w == 4:
                    for d in range(9): R(f"v_add_u32 v{AD+d}, {KVSZ}, v{AD+d}")
                    Q.append((lambda: ev.__setitem__("vread_k", ev["k"]), 0))
                    vphase[0] = True
                if w in (4, 6): win_reads((w - 4) // 2)
                if w % 2 == 0: Rwl(f"kwin{w//2}")
                for d in range(9):
                    x = KR + ((w // 2) * 9 + d) * 2 + (w & 1)
                    t = TT + (d % 2) * 2
                    R(f"v_lshlrev_b32 v{t}, 16, v{x}")
                    R(f"v_and_b32 v{t+1}, s56, v{x}")
                    a_ = TT + 4 + (d % 2) * 2
                    op = "v_mul_f32" if d < 2 else "v_fmac_f32"
                    R(f"{op} v{a_}, v{t}, v{QU+2*d}")
                    R(f"{op} v{a_+1}, v{t+1}, v{QU+2*d+1}")
                R(f"v_add_f32 v{TT+4}, v{TT+4}, v{TT+5}")
                R(f"v_add_f32 v{TT+6}, v{TT+6}, v{TT+7}")
                R(f"v_add_f32 v{LG+w}, v{TT+4}, v{TT+6}")
            win_reads(2); win_reads(3)
            sc = (18 ** -0.5) * 1.4426950408889634
            R(f"v_mov_b32 v{TT}, {f32(-1e9)}")
            for w in range(8): R(f"v_mul_f32 v{LG+w}, {f32(sc)}, v{LG+w}")
            for w in range(1, 8):
                def g(w=w):
                    A(f"v_cmp_gt_u32 vcc, {2*w}, v10")
                    A(f"v_cndmask_b32 v{LG+w}, v{LG+w}, v{TT}, vcc")
                Q.append((g, 2))
            R(f"v_max3_f32 v{TT+1}, v{LG}, v{LG+1}, v{LG+2}")
            R(f"v_max3_f32 v{TT+2}, v{LG+3}, v{LG+4}, v{LG+5}")
            R(f"v_max3_f32 v{TT+1}, v{TT+1}, v{LG+6}, v{LG+7}")
            R(f"v_max_f32 v{TT+1}, v{TT+1}, v{TT+2}")
            for w in range(8): R(f"v_sub_f32 v{LG+w}, v{LG+w}, v{TT+1}")
            for w in range(8): R(f"v_exp_f32 v{LG+w}, v{LG+w}")
            R(f"v_add_f32 v{TT+1}, v{LG}, v{LG+1}")
            R(f"v_add_f32 v{TT+2}, v{LG+2}, v{LG+3}")
            R(f"v_add_f32 v{TT+3}, v{LG+4}, v{LG+5}")
            R(f"v_add_f32 v{TT+4}, v{LG+6}, v{LG+7}")
            R(f"v_add_f32 v{TT+1}, v{TT+1}, v{TT+2}")
            R(f"v_add_f32 v{TT+3}, v{TT+3}, v{TT+4}")
            R(f"v_add_f32 v{TT+1}, v{TT+1}, v{TT+3}")
            R(f"v_rcp_f32 v{TT+8}, v{TT+1}")
            Q.append((lambda: None, 1))
            for w in range(8): R(f"v_mul_f32 v{LG+w}, v{LG+w}, v{TT+8}")
            for w in range(8):
                if w % 2 == 0: Rwl(f"win{w//2}")
                for d in range(9):
                    x = KR + ((w // 2) * 9 + d) * 2 + (w & 1)
                    t = TT + (d % 2) * 2
                    R(f"v_lshlrev_b32 v{t}, 16, v{x}")
                    R(f"v_and_b32 v{t+1}, s56, v{x}")
                    op = "v_mul_f32" if w == 0 else "v_fmac_f32"
                    R(f"{op} v{OA+2*d}, v{t}, v{LG+w}")
                    R(f"{op} v{OA+2*d+1}, v{t+1}, v{LG+w}")
            for s_ in ("s_lshl_b32 s54, s50, 2", "s_add_u32 s54, s54, s38", "s_mul_i32 s54, s54, 92160", "s_lshl_b32 s58, s51, 11",
                       "s_add_u32 s58, s58, s54", "s_lshr_b32 s59, s51, 2", "s_lshl_b32 s59, s59, 10", "s_add_u32 s54, s54, s59",
                       "s_and_b32 s59, s51, 3", "s_lshl_b32 s59, s59, 8", "s_add_u32 s54, s54, s59", "s_add_u32 s54, s54, 16384",
                       f"v_lshlrev_b32 v{QU}, 2, v0"):
                R(s_)
            for d in range(9): R(f"v_cvt_pk_bf16_f32 v{KR+d}, v{OA+2*d}, v{OA+2*d+1}")
            Rvm("o", f"buffer_store_dwordx4 {v(KR,4)}, v6, s[24:27], s58 offen sc1")
            Rvm("o", f"buffer_store_dwordx4 {v(KR+4,4)}, v6, s[24:27], s58 offen offset:1024 sc1")
            Rvm("o", f"buffer_store_dword v{KR+8}, v{QU}, s[24:27], s54 offen sc1")
            Q.append((lambda: ev.__setitem__("o_k", ev["k"]), 0))
            ATT = Q[:]; del Q[:]
            K0 = opt.get('k0', 13); LAST = opt.get("last", 28)
            OK_ = opt.get("ok", 26); F1K = opt.get("f1k", 5)
            tot = lambda q: sum(c for _, c in q)
            rate = (sum(tot(g_) for g_ in GG) + tot(ATT)) / (LAST + 1)
            n1 = opt.get('n1', 15)
            Q += sum(GG[:n1], [])
            REST = sum(GG[n1:], [])
            KA = opt.get("ka", 24)
            def run(b):
                while Q and b > 0:
                    f_, c_ = Q.pop(0); f_(); b -= c_
                return b
            POK = opt.get('pok', 30)
            t3 = {}
            def w3(st):
                A(f"s_add_u32 m0, s41, {((st + 2) % NS4) * S4}")
                A(f"s_mov_b32 s43, {st * 9216}")
                A.vm(f"buffer_load_dwordx4 v2, s[16:19], s43 offen {LD} lds")
                t3[st] = A.vm(f"buffer_load_dwordx4 v2, s[16:19], s43 offen offset:1024 {LD} lds")
                if not big:
                    lb = LL(f"w3_{st}")
                    A("s_cmp_eq_u32 s38, 3")
                    A(f"s_cbranch_scc0 {lb}")
                    t3[st] = A.vm_opt(f"buffer_load_dwordx4 v2, s[16:19], s43 offen offset:2048 {LD} lds")
                    A.label(lb)
            def a3(st):
                A(f"s_add_u32 m0, s40, {((st + 2) % NS4) * S4}")
                A(f"s_mov_b32 s42, {st * 2048}")
                A.vm(f"buffer_load_dwordx4 v1, s[24:27], s42 offen {LD} lds")
                t3[st] = A.vm(f"buffer_load_dwordx4 v1, s[24:27], s42 offen offset:1024 {LD} lds")
            A.wait_vm(tok[0])
            A("s_barrier")
            A("s_mul_i32 s37, s38, 9216")
            A(f"s_add_u32 s37, s37, {HQ}")
            A("v_add_u32 v7, s37, v6")
            for t in range(9): A.lg(f"ds_read_b128 {v(Z1+4*t,4)}, v7 offset:{t*1024}")
            A.wait_vm(tok[1])
            A.drain_lg()
            A("s_barrier")
            issueB(3)
            for k in range(N3):
                ev["k"] = k
                if k == K0: run(1e9); Q += ATT
                if k == KA + 1: run(1e9); Q += REST
                end = K0 - 1 if k < K0 else (KA if k <= KA else LAST)
                bud = tot(Q) / (end - k + 1) if k <= LAST else 0
                if k == F1K + 1 and NB == 5: flag_store2(A, LL, "f1", None, "s48", "s49", FQ)
                if k == K0 - 4:
                    poll_check(A, LL, "pfa", ev["pa"], "v248", 1, "0", 0, 244)
                    q_dma()
                if k == K0 - 3: kv_dma(1)
                if k == K0 + 1: kv_dma(2)
                if k == OK_ + 1 and NB == 5: flag_store2(A, LL, "fo", 1024, "s49", "s48", FW)
                left = [bud]
                def bt():
                    left[0] -= bud / 9 - run(min(bud / 9, left[0])) if left[0] > 0 else 0
                if k + 4 < N3:
                    issueA(A, k + 4, bt); issueB(k + 4, bt)
                if ctx['qst']: ev['st1'] = ctx['qst'].pop(0)(sr='s[28:31]')
                elif ST2 and k >= 12 and k % 2 == 0: ST2.pop(0)()
                if k == K0 - 6: ev["pa"] = poll_issue(A, "v248", 1, "0", 0, 244)
                run(left[0])
                if k == LAST: run(1e9)
                if k in (29, 30):
                    if k == 29:
                        A("s_mul_i32 s37, s38, 9216")
                        A("v_add_u32 v7, s37, v6")
                        A(f"v_mov_b32 v8, {NAD}")
                        A("v_mov_b32 v9, s71")
                        A.lg("ds_write_b32 v8, v9")
                    for q_ in (range(5) if k == 29 else range(5, 9)): A.lg(f"ds_write_b128 v7, {v(Z1+4*q_,4)} offset:{q_*1024}")
                if k == 28:
                    ids4(A)
                    A("s_lshl_b32 s40, s32, 2")
                    A("s_add_u32 s40, s40, s38")
                    A(f"s_mul_i32 s41, s40, {90*1024}")
                    A("v_add_u32 v1, s41, v6")
                    A(f"s_mul_i32 s41, s33, {90*4608}")
                    A("s_lshl_b32 s40, s38, 11")
                    A("s_add_u32 s41, s41, s40")
                    A("v_add_u32 v2, s41, v6")
                    A(f"s_add_u32 s40, s40, {SB4}")
                    A("s_add_u32 s41, s40, 8192")
                    srd(A, 16, 46, SZ_WP, WS_WP)
                    A("v_and_b32 v4, 15, v0")
                    A("v_lshlrev_b32 v4, 2, v4")
                    A("s_lshl_b32 s54, s49, 7")
                    A("s_xor_b32 s58, s54, 1024")
                    A("v_mov_b32 v248, s54")
                    A("v_mov_b32 v249, s58")
                    A("v_lshrrev_b32 v3, 4, v0")
                    A("v_cmp_eq_u32 vcc, 2, v3")
                    A("v_cndmask_b32 v248, v248, v249, vcc")
                    A(f"v_add_u32 v248, {FW}, v248")
                    A("v_add_u32 v248, v4, v248")
                    A("s_lshl_b32 s54, s32, 5")
                    A("s_add_u32 s54, s54, 1024")
                    A("v_and_b32 v249, 28, v4")
                    A("v_add_u32 v249, s54, v249")
                    A("v_cmp_eq_u32 vcc, 0, v3")
                    A("v_cndmask_b32 v248, v248, v249, vcc")
                    A("v_lshrrev_b32 v4, 1, v0")
                    A("v_and_b32 v4, 15, v4")
                    A("v_lshlrev_b32 v4, 4, v4")
                    A("v_and_b32 v3, 1, v0")
                    A("v_lshl_add_u32 v4, v3, 2, v4")
                    A("s_lshr_b32 s58, s32, 1")
                    A("s_lshl_b32 s58, s58, 8")
                    A("s_and_b32 s54, s32, 1")
                    A("s_lshl_b32 s54, s54, 3")
                    A("s_add_u32 s58, s58, s54")
                    A(f"s_add_u32 s58, s58, {FYO}")
                if k == POK - 1: ev["po"] = poll_issue(A, "v248", 1, "0", 0, 244)
                if k == POK: poll_check(A, LL, "pfo", ev["po"], "v248", 1, "0", 0, 244)
                if k >= POK:
                    for s3 in ({30: (0, 1, 2), 31: (3, 4)} if POK == 30 else {31: (0, 1, 2)})[k]: w3(s3); a3(s3)
                if k == F1K: A.wait_vm(ev["st1"])
                if k + 2 < N3: A.wait_vm(tok[k + 2])
                if k == K0 - 1: A.wait_vm(ev["kv"])
                if k == K0:
                    A.wait_lg(ev.get("qr"))
                if k == K0 + 2:
                    A.wait_vm(ev["kv"]); assert "vread_k" not in ev
                if k == OK_:
                    assert ev["o_k"] <= OK_ - 1, ev["o_k"]
                    A.wait_vm(max(ev["o"], ev["st2"]))
                if k == N3 - 1: A.drain_lg()
                if opt.get("trace3"):
                    A("s_memtime s[100:101]"); A.nlg += 2; A.drain_lg(); A(f"v_writelane_b32 v250, s100, {k}")
                A("s_barrier")
                if opt.get("trace3"):
                    A("s_memtime s[100:101]"); A.nlg += 2; A.drain_lg(); A(f"v_writelane_b32 v250, s100, {32+k}")
            if opt.get("trace3"):
                srd(A, 92, 46, 1 << 20, WS_DIAG + (1 << 20))
                A("s_lshl_b32 s100, s2, 3"); A("s_add_u32 s100, s100, s34"); A("s_lshl_b32 s100, s100, 8")
                A("v_lshlrev_b32 v251, 2, v0")
                A("buffer_store_dword v250, v251, s[92:95], s100 offen")
                A("s_waitcnt vmcnt(0)")
            for s3 in ((5, 6) if POK == 30 else (3, 4, 5, 6)): w3(s3); a3(s3)
            A.wait_vm(t3[0])
            A("s_barrier")
            for s3 in (7, 8): w3(s3); a3(s3)
            A.wait_vm(t3[1])
            A("s_barrier")
            for k in range(7):
                w3(k + 9)
                A.wait_vm(t3[k + 2])
                A("s_barrier")
            w3(16)
            if opt.get("one", 0):
                if big:
                    A("s_cmp_eq_u32 s34, 4")
                    A(f"s_cbranch_scc0 {LL('pfyok')}")
                    if opt.get("pp", 1) > 1: poll_pipe(A, LL, "pfy", "v4", "s58", 0, 244, opt.get("pp", 1))
                    else: poll(A, LL, "pfy", "v4", 1, "s58", 0, 244, sleep=opt.get("psl", 1))
                A("s_barrier")
            else:
                poll(A, LL, "pfy", "v4", 1, "s58", 0, 244, sleep=opt.get("psl", 1))
                A.vm_done = A.nvm - 1
            for s3 in range(9, 17): a3(s3)
            A.wait_vm(t3[9])
            A("s_barrier")
            for k in range(8, 15):
                a3(k + 9); w3(k + 9)
                A.wait_vm(t3[k + 2])
                A("s_barrier")
            A(f"s_mov_b32 s42, {24 * 2048}")
            A(f"s_mov_b32 s43, {24 * 9216}")
            A(f"s_mov_b32 s57, {((24 + 2) % NS4) * S4}")
            A("s_cmp_eq_u32 s38, 3")
            A(f"s_cbranch_scc1 {L('q5')}")
            A(f"s_branch {L('q4')}")

    def h_post(L):
        B = Asm()
        for NL in (4, 5):
            B.label(L(f"q{NL}"))
            def issue():
                B("s_add_u32 m0, s40, s57")
                B("s_add_u32 s37, s41, s57")
                B(f"buffer_load_dwordx4 v1, s[24:27], s42 offen {LD} lds")
                B(f"buffer_load_dwordx4 v1, s[24:27], s42 offen offset:1024 {LD} lds")
                B("s_mov_b32 m0, s37")
                B("s_add_u32 s42, s42, 2048")
                B(f"buffer_load_dwordx4 v2, s[16:19], s43 offen {LD} lds")
                B(f"buffer_load_dwordx4 v2, s[16:19], s43 offen offset:1024 {LD} lds")
                if NL == 5: B(f"buffer_load_dwordx4 v2, s[16:19], s43 offen offset:2048 {LD} lds")
                B(f"s_add_u32 s43, s43, 9216")
                B(f"s_add_u32 s57, s57, {S4}")
                B(f"s_cmp_eq_u32 s57, {NS4*S4}")
                B("s_cselect_b32 s57, 0, s57")
            B("s_mov_b32 s59, 0")
            B.label(L(f"lloop{NL}"))
            issue()
            B("s_add_u32 s59, s59, 1")
            B(f"s_cmp_lt_u32 s59, {N4 - 24}")
            B(f"s_waitcnt vmcnt({NL*7})")
            B("s_barrier")
            B(f"s_cbranch_scc1 {L(f'lloop{NL}')}")
            for k in range(36, N4):
                B(f"s_waitcnt vmcnt({NL*max(0, N4-1-(k+2))})")
                B("s_barrier")
            B("s_endpgm")
        return B.text()

    opt["m_tail"] = compute
    opt["h_tail"] = loaders
    opt["h_post"] = h_post
    return gen_p1(name, opt)
```

```python
from asmlib import *
from layout import *
import struct

def f32(x): return "0x%08x" % struct.unpack("<I", struct.pack("<f", x))[0]
SLOT = 18432
XA = 6 * SLOT; XP = 416
C1 = -2.0 * 0.7978845608028654 * 1.4426950408889634
C2 = C1 * 0.044715
SPIN = 200000
JOB = ["z2", "qkv", "z1"]
PITCH = [288, 224, 288]
NT = [9, 7, 9]
HQ = 163840 - 36864

M_TR, M_HA, M_XA = 1, 2, 3
M_BF = [4, 8, 12, 16, 20, 24, 28, 248, 252]
M_ACC = 32; M_AX = 104
H_D = 1
H_L16 = 6
H_Q = 7
H_W0, H_W1 = 11, 12
H_ST = 14
H_T = 24
H_C1 = 36
H_PR = 40
H_XR = 100
H_Z2 = 100
H_Z1 = 160
H_QK = [140, 144, 148, 152, 156, 196, 200]

def slot_plan(NI=6):
    slot_of = {s: s for s in range(NI)}; issue_at = {}; free = list(range(NI, 6)); nxt = NI; lent = {}; rp = None
    for st in range(0, 27):
        if st: free.append(slot_of[st - 1])
        if st == 8: free += [6, 7]
        if st in (11, 20): free += lent[st - 2]
        hold = 0
        if st in (8, 17): hold = 1
        if st in (9, 18):
            lent[st] = [free.pop(0), free.pop(0)]
        while len(free) > hold and nxt < 27 and len(issue_at.get(st, [])) < 2:
            slot_of[nxt] = free.pop(0); issue_at.setdefault(st, []).append(nxt); nxt += 1
        if nxt == 27 and rp is None and free and st >= 21:
            rp = (st, free.pop(0))
    return slot_of, issue_at, lent, rp

def gen_p1(name, opt):
    st_ = opt.get("stamp", None)
    PUB = opt.get("pub", 15); POLL = opt.get("poll", 18); FIN = opt.get("fin", 20); NRM = opt.get("nrm", 25); ZF = opt.get("zf", 26)
    NI = opt.get('ni', 6)
    slot_of, issue_at, lent, rp = slot_plan(NI)
    def trace_dump(A):
        srd(A, 92, 46, 1 << 20, WS_DIAG + (1 << 20))
        A("s_lshl_b32 s100, s2, 3")
        A("s_add_u32 s100, s100, s50")
        A("s_lshl_b32 s100, s100, 8")
        A("v_lshlrev_b32 v249, 2, v0")
        A("buffer_store_dword v250, v249, s[92:95], s100 offen")
        A("s_waitcnt vmcnt(0)")
    def code_warm(A, dst, tmp):
        lb = A.newlabel(f"{name}_pc")
        A("s_getpc_b64 s[14:15]")
        A.label(lb)
        A(f"s_sub_u32 s14, s14, {lb}-{name}")
        A("s_subb_u32 s15, s15, 0")
        A("s_lshr_b32 s52, s2, 3")
        A("s_lshl_b32 s52, s52, 2")
        A("s_add_u32 s52, s52, s51")
        A("s_lshl_b32 s52, s52, 10")
        A(f"s_min_u32 s52, s52, {name}_end-{name}-1020")
        A(f"v_lshlrev_b32 v{tmp}, 4, v0")
        A(f"v_add_u32 v{tmp}, s52, v{tmp}")
        A.vm(f"global_load_dwordx4 {v(dst,4)}, v{tmp}, s[14:15]")
    opt["code_warm"] = code_warm
    H = Asm(); kernel_header(H, name)
    L = lambda s_: f"{name}_{s_}"
    H("s_cmp_ge_u32 s2, 256")
    H(f"s_cbranch_scc1 {L('end')}")
    H("s_load_dwordx4 s[4:7], s[0:1], 0")
    H("s_load_dwordx4 s[8:11], s[0:1], 32")
    H("s_load_dwordx4 s[44:47], s[0:1], 72")
    H("s_memrealtime s[80:81]")
    H("s_load_dwordx2 s[72:73], s[0:1], 16")
    H("s_load_dwordx4 s[76:79], s[0:1], 56")
    H("s_and_b32 s50, s2, 7")
    H("s_lshr_b32 s51, s2, 3")
    H("s_lshr_b32 s48, s50, 2")
    H("s_lshl_b32 s48, s48, 3")
    H("s_lshr_b32 s52, s51, 2")
    H("s_add_u32 s48, s48, s52")
    H("s_and_b32 s49, s50, 3")
    H("s_lshl_b32 s49, s49, 2")
    H("s_and_b32 s52, s51, 3")
    H("s_add_u32 s49, s49, s52")
    if opt.get("map16"):
        H("s_lshr_b32 s48, s51, 1")
        H("s_lshl_b32 s49, s50, 1")
        H("s_and_b32 s52, s51, 1")
        H("s_add_u32 s49, s49, s52")
    H("v_lshrrev_b32 v1, 6, v0")
    H("v_and_b32 v0, 63, v0")
    H("v_readfirstlane_b32 s50, v1")
    H("s_nop 3")
    H("s_and_b32 s51, s50, 3")
    text = H.text()

    def ptr(A, n):
        if opt.get("ptrace"):
            A("s_memrealtime s[100:101]"); A("s_waitcnt lgkmcnt(0)"); A("s_sub_u32 s100, s100, s80"); A(f"v_writelane_b32 v250, s100, {n}")
    def x_loads(A, XR, vtmp):
        A(f"v_lshrrev_b32 v{vtmp}, 2, v0")
        A("s_and_b32 s3, s49, 3")
        A("s_lshl_b32 s3, s3, 1" if opt.get("rot", 1) else "s_mov_b32 s3, 0")
        A("s_add_u32 s3, s3, s50")
        A("s_and_b32 s3, s3, 7")
        A("s_lshl_b32 s3, s3, 4")
        A("s_lshl_b32 s52, s48, 7")
        A("s_add_u32 s52, s52, s3")
        A(f"v_add_u32 v{vtmp}, s52, v{vtmp}")
        A(f"v_mul_u32_u24 v{vtmp}, 1152, v{vtmp}")
        A(f"v_and_b32 v{vtmp+1}, 3, v0")
        A(f"v_lshl_add_u32 v{vtmp}, v{vtmp+1}, 4, v{vtmp}")
        A("s_waitcnt lgkmcnt(0)")
        srd(A, 12, 4, S * D * 2)
        return [A.vm(f"buffer_load_dwordx4 {v(XR(n),4)}, v{vtmp}, s[12:15], 0 offen offset:{n*64} {opt.get('xpol', '')}") for n in range(18)]
    def x_waddr(A, dst, t):
        A(f"v_lshrrev_b32 v{dst}, 2, v0")
        A(f"v_add_u32 v{dst}, s3, v{dst}")
        A(f"v_mul_u32_u24 v{dst}, {XP}, v{dst}")
        A(f"v_and_b32 v{t}, 1, v0")
        A(f"v_lshlrev_b32 v{t}, 4, v{t}")
        A(f"v_and_b32 v{t+1}, 2, v0")
        A(f"v_lshlrev_b32 v{t+1}, 2, v{t+1}")
        A(f"v_add3_u32 v{dst}, v{dst}, v{t}, v{t+1}")
        A(f"v_add_u32 v{dst}, {XA}, v{dst}")
    def fin_seq(m, q, r, inv):
        return [f"v_mul_f32 v{m}, {f32(inv)}, v{m}", f"v_mul_f32 v{q}, {f32(inv)}, v{q}", f"v_fma_f32 v{q}, -v{m}, v{m}, v{q}",
                f"v_max_f32 v{q}, 0, v{q}", f"v_add_f32 v{q}, {f32(1e-5)}, v{q}", f"v_rsq_f32 v{r}, v{q}", f"v_mul_f32 v{m}, -v{m}, v{r}"]
    def x_stats(A, XR, xt, ST):
        A("s_mov_b32 s61, 0x3f803f80")
        A("s_mov_b32 s62, 0xffff0000")
        for r in range(4): A(f"v_mov_b32 v{ST+r}, 0")
        for n in range(18):
            A.wait_vm(xt[n])
            if n in (0, 17): ptr(A, 59 if n == 0 else 60)
            for r in range(4):
                x = XR(n) + r; s0 = ST + (r & 1) * 2
                A(f"v_dot2_f32_bf16 v{s0}, v{x}, s61, v{s0}")
                A(f"v_dot2_f32_bf16 v{s0+1}, v{x}, v{x}, v{s0+1}")
        A(f"v_add_f32 v{ST}, v{ST}, v{ST+2}")
        A(f"v_add_f32 v{ST+1}, v{ST+1}, v{ST+3}")
        for qp in ("[1,0,3,2]", "[2,3,0,1]"):
            for r in (0, 1): A(f"v_add_f32_dpp v{ST+r}, v{ST+r}, v{ST+r} quad_perm:{qp} row_mask:0xf bank_mask:0xf")
        for s_ in fin_seq(ST, ST + 1, ST + 2, 1 / 576): A(s_)
        ptr(A, 61)
    def x_norm(XR, n, ST, T, pk):
        out = []
        for r in range(0, 4, 2):
            t = T + (r // 2) * 4
            for e in range(2):
                out.append(f"v_lshlrev_b32 v{t+2*e}, 16, v{XR(n)+r+e}")
                out.append(f"v_and_b32 v{t+2*e+1}, s62, v{XR(n)+r+e}")
            if pk:
                for e in range(2): out.append(f"v_pk_fma_f32 {v(t+2*e,2)}, {v(t+2*e,2)}, {v(ST+2,2)}, {v(ST,2)} op_sel_hi:[1,0,0]")
            else:
                for e in range(4): out.append(f"v_fma_f32 v{t+e}, v{t+e}, v{ST+2}, v{ST}")
            for e in range(2): out.append(f"v_cvt_pk_bf16_f32 v{XR(n)+r+e}, v{t+2*e}, v{t+2*e+1}")
        return out
    def x_write(XR, n, wa):
        o = (n % 6) * 8
        return f"ds_write2_b64 v{wa}, {v(XR(n),2)}, {v(XR(n)+2,2)} offset0:{o} offset1:{o+4}"
    PK = opt.get("pk", 1)

    A = Stream()
    XRM = lambda n: (M_ACC + 4 * n) if n < 6 else (M_AX + 4 * n)
    A("s_cmp_ge_u32 s50, 4")
    A(f"s_cbranch_scc1 {L('H')}")
    xtm = x_loads(A, XRM, 14)
    ptr(A, 58)
    if opt.get("cpf", 0):
        srd(A, 16, 8, D * F * 2)
        A("v_mul_u32_u24 v4, 21846, v0")
        A("v_lshrrev_b32 v4, 16, v4")
        A("v_mul_u32_u24 v5, 3, v4")
        A("v_sub_u32 v5, v0, v5")
        A("v_mul_u32_u24 v4, 9216, v4")
        A("v_lshl_add_u32 v4, v5, 7, v4")
        A("s_and_b32 s52, s48, 7")
        A(f"s_add_u32 s52, s52, {opt.get('cp0', 2)}")
        A("s_min_u32 s52, s52, 8")
        A("s_lshl_b32 s52, s52, 2")
        A("s_add_u32 s52, s52, s51")
        A(f"s_mul_i32 s52, s52, {16*9216}")
        A("s_mul_i32 s53, s49, 288")
        A("s_andn2_b32 s53, s53, 127")
        A("s_add_u32 s52, s52, s53")
        A("s_add_u32 s52, s52, 4608")
        A("s_mov_b32 exec_hi, 0xffff")
        A.vm("buffer_load_dword v249, v4, s[16:19], s52 offen")
        A("s_mov_b64 exec, -1")
    x_waddr(A, 248, 4)
    A("v_lshrrev_b32 v4, 2, v0")
    A(f"v_mul_u32_u24 v{M_TR}, 288, v4")
    A("v_and_b32 v4, 3, v0")
    A(f"v_lshl_add_u32 v{M_TR}, v4, 3, v{M_TR}")
    A("s_mul_i32 s52, s51, 9216")
    A(f"v_lshlrev_b32 v{M_HA}, 4, v0")
    A("v_and_b32 v4, 15, v0")
    A("s_lshl_b32 s53, s51, 5")
    A("v_add_u32 v4, s53, v4")
    A(f"v_mul_u32_u24 v4, {XP}, v4")
    A("v_bfe_u32 v5, v0, 4, 1")
    A("v_lshl_add_u32 v4, v5, 5, v4")
    A("v_lshrrev_b32 v5, 5, v0")
    A("v_lshl_add_u32 v4, v5, 4, v4")
    A(f"v_add_u32 v{M_XA}, {XA}, v4")
    A("s_lshr_b32 s52, s2, 3")
    A("s_lshl_b32 s52, s52, 2")
    A("s_add_u32 s52, s52, s51")
    A("s_and_b32 s52, s52, 31")
    A("s_lshl_b32 s53, s52, 21")
    A("s_waitcnt lgkmcnt(0)")
    A("s_add_u32 s68, s46, s53")
    A("s_addc_u32 s69, s47, 0")
    for lo, reg in ((22, 10), (26, 72), (27, 76), (29, 78)):
        A(f"s_sub_u32 s53, s52, {lo}")
        A("s_lshl_b32 s53, s53, 21" if lo == 22 else "s_lshl_b32 s53, s53, 20")
        A(f"s_add_u32 s70, s{reg}, s53")
        A(f"s_addc_u32 s71, s{reg+1}, 0")
        A(f"s_cmp_ge_u32 s52, {lo}")
        A("s_cselect_b32 s68, s70, s68")
        A("s_cselect_b32 s69, s71, s69")
    if opt.get("cw", 1): code_warm(A, 252, 4)
    WPF = []
    def xreads(r):
        o = []
        for c in range(2 * r, 2 * r + 2):
            for rt in range(2):
                o.append(f"ds_read_b128 {v(M_AX+(rt*18+c)*4,4)}, v{M_XA} offset:{rt*16*XP + (c%6)*64}")
        return o
    x_stats(A, XRM, xtm, 4)
    for n in range(6):
        for s_ in x_norm(XRM, n, 4, 8, PK): A(s_)
        A.lg(x_write(XRM, n, 248))
    for n in range(6, 18):
        for s_ in x_norm(XRM, n, 4, 8, PK): A(s_)
    A.drain_lg()
    ptr(A, 62)
    A("s_barrier")
    ptr(A, 63)
    for s_ in xreads(0) + xreads(1) + xreads(2): A.lg(s_)
    A("v_mov_b32 v251, 0")
    A("s_mov_b64 exec, 1")
    A.vm("global_load_dword v251, v251, s[68:69]")
    A("s_mov_b64 exec, -1")
    A.drain_lg()
    A("s_barrier")
    if st_ is not None: stamp(A, 82); A.nlg += 2; A.drain_lg()
    acc = lambda t, rt: M_ACC + (t * 2 + rt) * 4
    FR = [(job, job * 9 + s9, c, t) for job in range(3) for s9 in range(9) for c in range(2) for t in range(NT[job])]
    NB = 7
    DIST = opt.get("dist", 6)
    rtok = {}; cur = [0]
    def issue_read(n):
        job, st, c, t = FR[n]
        b = M_BF[n % NB]; p = PITCH[job]
        if st != cur[0]:
            d = (slot_of[st] - slot_of[st - 1]) * SLOT
            A(f"v_add_u32 v{M_TR}, {d}, v{M_TR}" if d > 0 else f"v_subrev_u32 v{M_TR}, {-d}, v{M_TR}")
            if st in (9, 18):
                A(f"v_lshrrev_b32 v{b}, 2, v0")
                A(f"v_lshlrev_b32 v{b}, 6, v{b}")
                A(f"v_sub_u32 v{M_TR}, v{M_TR}, v{b}" if st == 9 else f"v_add_u32 v{M_TR}, v{M_TR}, v{b}")
            cur[0] = st
        A.lg(f"ds_read_b64_tr_b16 {v(b,2)}, v{M_TR} offset:{c*32*p + t*32}")
        rtok[n] = A.lg(f"ds_read_b64_tr_b16 {v(b+2,2)}, v{M_TR} offset:{(c*32+16)*p + t*32}")
    def handoff(t, base_i):
        c = acc(t, 0)
        for q in range(4): A(f"v_cvt_pk_bf16_f32 v{c+q}, v{c+2*q}, v{c+2*q+1}")
        return A.lg(f"ds_write_b128 v{M_XA}, {v(c,4)} offset:{t*1024}")
    for n in range(DIST): issue_read(n)
    ms = 0; extra = [x_write(XRM, 6, 248), x_write(XRM, 7, 248)]; ev = {}; pend = []
    XRD = {p - 1: p for p in range(3, 9)}
    LASTB = opt.get('lastb', 23)
    for n, (job, st, c, t) in enumerate(FR):
        k = (st % 9) * 2 + c
        if st != ms:
            while extra: ev["x"] = A.lg(extra.pop(0))
            if 1 <= st <= 8 or st in (10, 19): A.wait_lg(ev.get("x"))
            if opt.get("trace"):
                A("s_memtime s[100:101]"); A.nlg += 2; A.drain_lg(); A(f"v_writelane_b32 v250, s100, {2*st}")
            if st <= LASTB: A("s_barrier")
            ms = st
            if opt.get("trace"):
                A("s_memtime s[100:101]"); A.nlg += 2; A.drain_lg(); A(f"v_writelane_b32 v250, s100, {2*st+1}")
            if st in XRD: extra = xreads(XRD[st])
            if 1 <= st <= 5: extra = [x_write(XRM, 2 * st + 6, 248), x_write(XRM, 2 * st + 7, 248)] + extra
            if st in (9, 18):
                a_, b_ = lent[st]
                A("s_and_b32 s52, s51, 1")
                A("s_mul_i32 s52, s52, 9216")
                A("s_cmp_lt_u32 s51, 2")
                A(f"s_cselect_b32 s53, {a_}, {b_}")
                A(f"s_mul_i32 s53, s53, {SLOT}")
                A("s_add_u32 s52, s52, s53")
                A(f"v_add_u32 v{M_XA}, s52, v{M_HA}")
                pend = list(range(NT[job - 1]))
        if n + DIST < len(FR): issue_read(n + DIST)
        if extra and n % 2 == 0: ev["x"] = A.lg(extra.pop(0))
        if WPF and t == 4 and st >= opt.get("wps", 0): A.vm(WPF.pop(0))
        if t in pend:
            pend.remove(t); ev["x"] = handoff(t, 0)
        elif pend and c == 1 and k == 1:
            ev["x"] = handoff(pend.pop(0), 0)
        A.wait_lg(rtok[n])
        b = M_BF[n % NB]
        for rt in range(2):
            cc = "0" if k == 0 else v(acc(t, rt), 4)
            A(f"v_mfma_f32_16x16x32_bf16 {v(acc(t,rt),4)}, {v(b,4)}, {v(M_AX+(rt*18+k)*4,4)}, {cc}")
    if st_ is not None: stamp(A, 88); A.nlg += 2
    A.drain_lg(); A.drain_vm()
    if opt.get("trace"): trace_dump(A)
    A("s_barrier")
    A("s_mul_i32 s52, s51, 9216")
    A(f"s_add_u32 s52, s52, {HQ}")
    A(f"v_add_u32 v{M_XA}, s52, v{M_HA}")
    for t in range(9): handoff(t, 0)
    opt["m_tail"](A, L)
    text += A.text()

    A = Stream()
    A.label(L("H"))
    if opt.get("hprio", 0): A("s_setprio 2")
    XR = XRM
    A("s_mul_i32 s54, s51, 5")
    A("s_cmp_eq_u32 s51, 3")
    A("s_mul_i32 s55, s51, 4")
    A("s_cselect_b32 s54, 14, s54")
    A("s_cselect_b32 s55, 11, s55")
    A("s_lshl_b32 s54, s54, 6")
    A("s_lshl_b32 s55, s55, 6")
    A("s_mul_i32 s53, s49, 288")
    def voffs(dst, n, sfirst, magic, per, stride, scol):
        for p in range(n):
            A(f"v_add_u32 v15, {sfirst}, v0")
            if p: A(f"v_add_u32 v15, {64*p}, v15")
            A(f"v_mul_u32_u24 v16, {magic}, v15")
            A("v_lshrrev_b32 v16, 16, v16")
            A(f"v_mul_u32_u24 v17, {per}, v16")
            A("v_sub_u32 v15, v15, v17")
            A(f"v_mul_u32_u24 v16, {stride}, v16")
            A("v_lshlrev_b32 v15, 4, v15")
            A(f"v_add3_u32 v{dst+p}, v16, v15, {scol}")
            if 0 < p < 4: A(f"v_subrev_u32 v{dst+p}, {1024*p}, v{dst+p}")
    voffs(H_D, 5, "s54", 3641, 18, 9216, "s53")
    A("s_lshl_b32 s54, s54, 4")
    A("s_mul_i32 s67, s49, 27")
    A("s_lshr_b32 s67, s67, 2")
    A("s_lshl_b32 s67, s67, 5")
    def voffs2():
        for p in range(4):
            A(f"v_add_u32 v15, s55, v0")
            if p: A(f"v_add_u32 v15, {64*p}, v15")
            A("v_mul_u32_u24 v16, 4682, v15")
            A("v_lshrrev_b32 v16, 16, v16")
            A("v_mul_u32_u24 v17, 14, v16")
            A("v_sub_u32 v15, v15, v17")
            A("v_mul_u32_u24 v16, 3456, v16")
            A("v_lshlrev_b32 v15, 4, v15")
            A(f"v_add3_u32 v{H_Q+p}, v16, v15, s67")
            if p: A(f"v_subrev_u32 v{H_Q+p}, {1024*p}, v{H_Q+p}")
        A("s_lshl_b32 s55, s55, 4")
    voffs2()
    xt = x_loads(A, XR, 14)
    ptr(A, 58)
    srd(A, 16, 8, D * F * 2)
    srd(A, 20, 6, D * 1728 * 2)
    A(f"v_lshlrev_b32 v{H_L16}, 4, v0")
    x_waddr(A, H_W0, 15)
    srd(A, 24, 46, SZ_Z, WS_Z2N)
    srd(A, 32, 46, SZ_QKV, WS_QKV)
    srd(A, 36, 46, SZ_STAT, WS_STAT)
    srd(A, 40, 44, 256)
    A("s_cmp_ge_u32 s51, 2")
    A(f"s_cbranch_scc1 {L('H4')}")
    text += A.text()
    base = A

    def hprog(big):
        A = Stream()
        A.nvm, A.vm_done, A.nlg, A.lg_done = base.nvm, base.vm_done, base.nlg, base.lg_done
        LL = lambda s_: L(f"{s_}_{int(big)}")
        tok = {}; ev = {}
        def dma_items(st):
            slot = slot_of[st]; job = st // 9; out = []
            if JOB[job] != "qkv":
                so = (4608 if JOB[job] == "z2" else 0) + (st % 9) * 64 * 9216
                n_, vb, sr, lb = (5 if big else 4), H_D, "s[16:19]", "s54"
            else:
                so = (st % 9) * 64 * 3456
                n_, vb, sr, lb = (4 if big else 3), H_Q, "s[20:23]", "s55"
            for p in range(n_):
                def g(p=p):
                    if p == 0:
                        A(f"s_add_u32 m0, {lb}, {slot*SLOT}"); A(f"s_mov_b32 s60, {so}")
                    if p == 4:
                        A(f"s_add_u32 m0, {lb}, {slot*SLOT+4096}"); A("s_nop 0")
                    tok[st] = A.vm(f"buffer_load_dwordx4 v{vb+p}, {sr}, s60 offen offset:{(p%4)*1024} lds")
                out.append(g)
            return out
        for st in range(2):
            for g in dma_items(st): g()
        ST = H_ST
        x_stats(A, XR, xt, ST)
        norm_ins = lambda n, pk=0: x_norm(XR, n, ST, H_T, pk)
        xwrite = lambda n: A.lg(x_write(XR, n, H_W0))
        late = []
        for st in range(2, NI): late += dma_items(st)
        for n in range(6):
            for q_, s_ in enumerate(norm_ins(n, PK)):
                A(s_)
                if opt.get('lint', 1) and q_ % 6 == 5 and late: late.pop(0)()
            xwrite(n)
        A.drain_lg()
        ptr(A, 62)
        A("s_barrier")
        ptr(A, 63)
        while late: late.pop(0)()
        A(f"v_mov_b32 v{H_C1}, {f32(C1)}")
        if big:
            A("s_or_b32 s71, s80, 1")
            A("s_lshl_b32 s52, s2, 2")
            A("s_add_u32 s52, s52, s51")
            A("s_cmp_eq_u32 s52, 0")
            A(f"s_cbranch_scc0 {LL('nn')}")
            A(f"v_mov_b32 v{H_T}, s71")
            A("s_mov_b64 exec, 1")
            A.vm_opt(f"buffer_store_dword v{H_T}, off, s[40:43], 0 sc1")
            A("s_mov_b64 exec, -1")
            A.label(LL("nn"))
        def wpf_setup():
            D_ = H_PR + 8
            out = []
            A("s_lshl_b32 s52, s2, 2")
            A("s_add_u32 s52, s52, s51")
            A("s_mul_i32 s4, s52, 1944")
            for q_ in range(3):
                A(f"s_add_u32 s53, s52, {1024*q_}")
                A("s_mul_i32 s63, s53, 13108")
                A("s_lshr_b32 s63, s63, 16")
                A("s_mul_i32 s64, s63, 5")
                A("s_sub_u32 s53, s53, s64")
                A("s_mul_i32 s53, s53, 896")
                A("s_mul_i32 s63, s63, 9216")
                A(f"s_add_u32 s{5+q_}, s53, s63")
            for p in range(2): out.append(lambda p=p: A.vm(f"buffer_load_dwordx4 {v(D_,4)}, v{H_L16}, s[20:23], s4 offen offset:{p*1024}"))
            for q_ in range(3): out.append(lambda q_=q_: A.vm(f"buffer_load_dwordx4 {v(D_,4)}, v{H_L16}, s[16:19], s{5+q_} offen"))
            A("s_lshl_b32 s8, s52, 13")
            A("s_add_u32 s9, s8, 4096")
            A("s_mul_i32 s65, s52, 648")
            A("s_mul_i32 s66, s52, 2592")
            srd(A, 12, 10, S * S * 2)
            srd(A, 28, 76, FH * D * 2)
            for p in range(3): out.append(lambda p=p: A.vm(f"buffer_load_dwordx4 {v(D_,4)}, v{H_L16}, s[28:31], s66 offen offset:{p*784}"))
            def wo_():
                srd(A, 28, 72, D * D * 2)
                A.vm(f"buffer_load_dwordx4 {v(D_,4)}, v{H_L16}, s[28:31], s65 offen")
            out.append(wo_)
            for p in range(8): out.append(lambda p=p: A.vm(f"buffer_load_dwordx4 {v(D_,4)}, v{H_L16}, s[12:15], {'s8' if p < 4 else 's9'} offen offset:{(p%4)*1024}"))
            return out
        HPF = wpf_setup() if opt.get("wpf", 1) else []
        Q = []
        class Rec:
            def __init__(s_, dl): s_.dl = dl
            def __call__(s_, t):
                if t == "gap": Q.append((lambda: None, s_.dl, 1)); return
                cost = 2 if t.startswith(("v_exp", "v_rcp", "v_rsq")) else (1 if t.startswith("v_") else 0.5)
                Q.append((lambda: A(t), s_.dl, cost))
            def grp(s_, fn, cost=1): Q.append((fn, s_.dl, cost))
            def vm(s_, nm, t): Q.append((lambda: ev.__setitem__(nm, A.vm(t)), s_.dl, 3))
            def lg(s_, nm, t): Q.append((lambda: ev.__setitem__(nm, A.lg(t)), s_.dl, 1))
            def wait_vm(s_, nm): Q.append((lambda: A.wait_vm(ev.get(nm)), s_.dl, 0.5))
            def wait_lg(s_, nm): Q.append((lambda: A.wait_lg(ev.get(nm)), s_.dl, 0.5))
        def run(budget):
            while Q and budget > 0:
                fn, _, cost = Q.pop(0); fn(); budget -= cost
        def stage_budget(st):
            b = opt.get("hbase", [35, 45, 60])[st // 9]
            cum = 0.0
            for _, dl, cost in Q:
                cum += cost
                if dl <= 27 and dl > st: b = max(b, cum / (dl - st))
            return b
        def flush(dl):
            idx = [q for q, it in enumerate(Q) if it[1] <= dl]
            if idx:
                for _ in range(idx[-1] + 1): Q.pop(0)[0]()
        def front(fn, dl):
            k_ = 0
            if ev.get("ingrp"):
                while Q[k_][0] is not endgrp: k_ += 1
                k_ += 1
            head = [(f, min(d, dl), c) for f, d, c in Q[:k_]]
            rest = Q[k_:]; del Q[:]; Q.extend(head); fn(Rec(dl)); Q.extend(rest)
        def begingrp(): ev["ingrp"] = True
        def endgrp(): ev["ingrp"] = False
        T = H_T
        def gelu(R, P, stats=None, first=False):
            X = [T + r for r in range(4)]; U = [T + 4 + r for r in range(4)]
            R.grp(begingrp, 0)
            R(f"v_lshlrev_b32 v{X[0]}, 16, v{P}")
            R(f"v_and_b32 v{X[1]}, s62, v{P}")
            R(f"v_lshlrev_b32 v{X[2]}, 16, v{P+1}")
            R(f"v_and_b32 v{X[3]}, s62, v{P+1}")
            for r in range(4): R(f"v_mul_f32 v{U[r]}, v{X[r]}, v{X[r]}")
            for r in range(4): R(f"v_fmamk_f32 v{U[r]}, v{U[r]}, {f32(C2)}, v{H_C1}")
            for r in range(4): R(f"v_mul_f32 v{U[r]}, v{U[r]}, v{X[r]}")
            for r in range(4): R(f"v_exp_f32 v{U[r]}, v{U[r]}")
            for r in range(4): R(f"v_add_f32 v{U[r]}, 1.0, v{U[r]}")
            for r in range(4): R(f"v_rcp_f32 v{U[r]}, v{U[r]}")
            for r in range(4): R(f"v_mul_f32 v{X[r]}, v{X[r]}, v{U[r]}")
            R(f"v_cvt_pk_bf16_f32 v{P}, v{X[0]}, v{X[1]}")
            R(f"v_cvt_pk_bf16_f32 v{P+1}, v{X[2]}, v{X[3]}")
            if stats is not None:
                a0, a1, q0, q1 = stats
                if first:
                    R(f"v_add_f32 v{a0}, v{X[0]}, v{X[1]}")
                    R(f"v_mul_f32 v{q0}, v{X[0]}, v{X[0]}")
                    R(f"v_mul_f32 v{q1}, v{X[2]}, v{X[2]}")
                    R(f"v_add_f32 v{a1}, v{X[2]}, v{X[3]}")
                else:
                    R(f"v_add_f32 v{a0}, v{a0}, v{X[0]}")
                    R(f"v_fmac_f32 v{q0}, v{X[0]}, v{X[0]}")
                    R(f"v_add_f32 v{a1}, v{a1}, v{X[2]}")
                    R(f"v_fmac_f32 v{q1}, v{X[2]}, v{X[2]}")
                    R(f"v_add_f32 v{a0}, v{a0}, v{X[1]}")
                    R(f"v_add_f32 v{a1}, v{a1}, v{X[3]}")
                R(f"v_fmac_f32 v{q0}, v{X[1]}, v{X[1]}")
                R(f"v_fmac_f32 v{q1}, v{X[3]}, v{X[3]}")
            R.grp(endgrp, 0)
        def hread(R, st, dst, nm, nt=9):
            a_, b_ = lent[st]
            R(f"s_and_b32 s63, s51, 1")
            R("s_mul_i32 s63, s63, 9216")
            R(f"s_add_u32 s63, s63, {(a_ if big else b_)*SLOT}")
            R(f"v_add_u32 v{T}, s63, v{H_L16}")
            for t in range(nt): R.lg(nm, f"ds_read_b128 {v(dst[t] if isinstance(dst, list) else dst+4*t,4)}, v{T} offset:{t*1024}")
            R.wait_lg(nm)
        def xq(R, regs):
            n_ = len(regs)
            for sw in ("v_permlane32_swap_b32", "v_permlane16_swap_b32"):
                for q, r in enumerate(regs): R(f"v_mov_b32 v{T+q}, v{r}")
                for q, r in enumerate(regs): R(f"{sw} v{r}, v{T+q}")
                for q, r in enumerate(regs): R(f"v_add_f32 v{r}, v{r}, v{T+q}")
        def publish(R):
            R.grp(begingrp, 0)
            for rt in range(2):
                s0 = ST + 4 * rt
                R(f"v_add_f32 v{s0}, v{s0}, v{s0+1}")
                R(f"v_add_f32 v{s0+2}, v{s0+2}, v{s0+3}")
            xq(R, [ST, ST + 2, ST + 4, ST + 6])
            R("s_mov_b32 s64, 0xffff0000")
            R("s_mov_b32 s65, 0")
            R(f"v_cndmask_b32 v{T}, v{ST}, v{ST+4}, s[64:65]")
            R(f"v_cndmask_b32 v{T+2}, v{ST+2}, v{ST+6}, s[64:65]")
            R(f"v_mov_b32 v{T+1}, s71")
            R(f"v_mov_b32 v{T+3}, s71")
            for s_ in ("s_lshl_b32 s63, s48, 4", "s_add_u32 s63, s63, s49", "s_lshl_b32 s63, s63, 2", "s_add_u32 s63, s63, s51", "s_lshl_b32 s63, s63, 9"):
                R(s_)
            def g():
                A("s_mov_b32 exec_hi, 0")
                ev["pub"] = A.vm(f"buffer_store_dwordx4 {v(T,4)}, v{H_L16}, s[36:39], s63 offen sc1")
                A("s_mov_b64 exec, -1")
            R.grp(g, 3)
            R.grp(endgrp, 0)
        PR = [H_PR + 4 * k for k in range(8)]
        zlate = []
        PA_ = T + 8
        def part_strs():
            return [f"buffer_load_dwordx4 {v(PR[rt*4+e],4)}, v{PA_}, s[36:39], {'s64' if e < 2 else 's65'} offen offset:{(e&1)*2048 + rt*256} sc1" for rt in range(2) for e in range(4)]
        def part_issue(R):
            R(f"v_lshrrev_b32 v{PA_}, 4, v0")
            R(f"v_lshlrev_b32 v{PA_}, 13, v{PA_}")
            R(f"v_and_b32 v{PA_+1}, 15, v0")
            R(f"v_lshl_add_u32 v{PA_}, v{PA_+1}, 4, v{PA_}")
            for s_ in ("s_lshl_b32 s64, s48, 15", "s_lshl_b32 s65, s51, 9", "s_add_u32 s64, s64, s65", "s_add_u32 s65, s64, 4096"): R(s_)
            for s_ in part_strs(): R.vm("part", s_)
        def tag_strs():
            o = [f"v_xor_b32 v{T}, s71, v{PR[0]+1}", f"v_xor_b32 v{T+1}, s71, v{PR[0]+3}"]
            for k in range(1, 8):
                o += [f"v_xor_b32 v{T+2}, s71, v{PR[k]+1}", f"v_xor_b32 v{T+3}, s71, v{PR[k]+3}", f"v_or3_b32 v{T+(k&1)}, v{T+(k&1)}, v{T+2}, v{T+3}"]
            o += [f"v_or_b32 v{T}, v{T}, v{T+1}"]
            return o
        def final(R):
            R.grp(begingrp, 0)
            final_(R)
            R.grp(endgrp, 0)
        def final_(R):
            R.wait_vm("part")
            for s_ in tag_strs(): R(s_)
            def chk():
                A(f"v_cmp_ne_u32 vcc, 0, v{T}")
                A("s_nop 4")
                A(f"s_cbranch_vccz {LL('pok')}")
                A("s_mov_b32 s63, 0")
                A.label(LL("pspin"))
                A("s_sleep 4")
                for s_ in part_strs(): A(s_)
                A("s_add_u32 s63, s63, 1")
                A(f"s_cmp_gt_u32 s63, {SPIN}")
                A(f"s_cbranch_scc1 {LL('pok')}")
                A("s_waitcnt vmcnt(0)")
                for s_ in tag_strs(): A(s_)
                A(f"v_cmp_ne_u32 vcc, 0, v{T}")
                A("s_nop 4")
                A(f"s_cbranch_vccnz {LL('pspin')}")
                A.label(LL("pok"))
            R.grp(chk, 2)
            for rt in range(2):
                for c_ in range(2):
                    q0, q1, q2, q3 = [PR[rt * 4 + e] + 2 * c_ for e in range(4)]
                    R(f"v_add_f32 v{q0}, v{q0}, v{q1}")
                    R(f"v_add_f32 v{q2}, v{q2}, v{q3}")
            for rt in range(2):
                for c_ in range(2):
                    R(f"v_add_f32 v{ST+4*rt+c_}, v{PR[rt*4]+2*c_}, v{PR[rt*4+2]+2*c_}")
            xq(R, [ST, ST + 1, ST + 4, ST + 5])
            for a_, b_ in zip(fin_seq(ST, ST + 1, ST + 2, 1 / FH), fin_seq(ST + 4, ST + 5, ST + 6, 1 / FH)):
                R(a_); R(b_)
            R(f"v_bfe_u32 v{PA_+1}, v0, 4, 1")
            R(f"v_lshlrev_b32 v{PA_+1}, 2, v{PA_+1}")
            R(f"v_xor_b32 v{PA_+1}, v0, v{PA_+1}")
            R(f"v_lshlrev_b32 v{PA_+1}, 4, v{PA_+1}")
            for s_ in ("s_lshl_b32 s66, s49, 6", "s_lshl_b32 s63, s48, 2", "s_add_u32 s66, s66, s63", "s_add_u32 s66, s66, s51",
                       "s_mul_i32 s66, s66, 9216", "s_mov_b32 s14, 0", "s_mov_b32 s15, -1"):
                R(s_)
            for t in range(9):
                P = H_Z2 + 4 * t; O = H_PR + t * 4
                for rt in range(2):
                    X = [T + 4 * rt + r for r in range(4)]
                    R(f"v_lshlrev_b32 v{X[0]}, 16, v{P+2*rt}")
                    R(f"v_and_b32 v{X[1]}, s62, v{P+2*rt}")
                    R(f"v_lshlrev_b32 v{X[2]}, 16, v{P+2*rt+1}")
                    R(f"v_and_b32 v{X[3]}, s62, v{P+2*rt+1}")
                    for r in range(4): R(f"v_fma_f32 v{X[r]}, v{X[r]}, v{ST+4*rt+2}, v{ST+4*rt}")
                    R(f"v_cvt_pk_bf16_f32 v{P+2*rt}, v{X[0]}, v{X[1]}")
                    R(f"v_cvt_pk_bf16_f32 v{P+2*rt+1}, v{X[2]}, v{X[3]}")
                R(f"v_cndmask_b32 v{O}, v{P}, v{P+2}, s[14:15]")
                R(f"v_cndmask_b32 v{O+1}, v{P+1}, v{P+3}, s[14:15]")
                R(f"v_cndmask_b32 v{O+2}, v{P+2}, v{P}, s[14:15]")
                R(f"v_cndmask_b32 v{O+3}, v{P+3}, v{P+1}, s[14:15]")
                def zs(t=t, O=O):
                    A(f"s_add_u32 s63, s66, {t*1024}")
                    ev["zst"] = A.vm(f"buffer_store_dwordx4 {v(O,4)}, v{PA_+1}, s[24:27], s63 offen {opt.get('zp', 'sc1')}")
                if t < opt.get("zearly", 4): R.grp(zs, 3)
                else: zlate.append(zs)
        def nonce_get(R):
            R.wait_vm("nonce")
            def g():
                A("s_mov_b32 s64, 0")
                A.label(LL("nspin"))
                A(f"v_readfirstlane_b32 s71, v{H_PR}")
                A("s_add_u32 s64, s64, 1")
                A(f"s_cmp_gt_u32 s64, {SPIN}")
                A(f"s_cbranch_scc1 {LL('nok')}")
                A("s_cmp_lg_u32 s71, 0")
                A(f"s_cbranch_scc1 {LL('nok')}")
                A("s_sleep 8")
                A(f"buffer_load_dword v{H_PR}, off, s[40:43], 0 sc1")
                A("s_waitcnt vmcnt(0)")
                A(f"s_branch {LL('nspin')}")
                A.label(LL("nok"))
            R.grp(g, 3)
        def pf_setup(R):
            for s_ in ("s_mov_b32 s28, s10", "s_mov_b32 s29, s11", f"s_mov_b32 s30, {S*S*2}", "s_mov_b32 s31, 0x00020000",
                       "s_lshl_b32 s68, s2, 2", "s_add_u32 s68, s68, s51", "s_lshl_b32 s68, s68, 13"):
                R(s_)
        def pf_item(p):
            def g():
                A.vm(f"buffer_load_dwordx4 {v(H_PR+4,4)}, v{H_L16}, s[28:31], s68 offen offset:{(p%4)*1024}")
                if p == 3: A("s_add_u32 s68, s68, 4096")
            return g
        RT = H_PR + 16
        def repack_issue(R, slot):
            def g():
                for s_ in ("s_lshr_b32 s4, s49, 3", "s_lshl_b32 s4, s4, 4", "s_add_u32 s4, s4, s48", "s_lshl_b32 s4, s4, 2", "s_add_u32 s68, s4, s51", "s_and_b32 s59, s49, 7",
                           "s_sub_u32 s4, s68, 18", "s_lshr_b32 s12, s4, 3", "s_and_b32 s13, s4, 7",
                           "s_mul_i32 s12, s12, 288", "s_lshl_b32 s9, s13, 5", "s_add_u32 s12, s12, s9",
                           "s_mul_i32 s4, s4, 288", f"s_sub_u32 s4, s4, {64*288 - 128}",
                           "s_cmp_ge_u32 s13, 4", "s_cselect_b32 s9, 16, 0", "s_add_u32 s12, s12, s9",
                           "s_cmp_ge_u32 s68, 82", "s_cselect_b32 s4, s4, s12", "s_cselect_b32 s5, 144, 16",
                           "s_mov_b32 s6, 8", "s_mov_b32 s7, 4", "s_mov_b32 s8, 2",
                           "s_lshr_b32 s9, s68, 1", "s_mul_i32 s9, s9, 72", "s_and_b32 s12, s68, 1", "s_lshl_b32 s12, s12, 3", "s_add_u32 s9, s9, s12",
                           "s_cmp_lt_u32 s68, 16", "s_cselect_b32 s4, s9, s4", "s_cselect_b32 s5, 4, s5", "s_cselect_b32 s6, 36, s6", "s_cselect_b32 s7, 18, s7",
                           "s_mul_i32 s9, s68, 288", f"s_sub_u32 s9, s9, {16*288 - 16}", "s_and_b32 s12, s68, 0xfffffffe",
                           "s_cmp_eq_u32 s12, 16", "s_cselect_b32 s4, s9, s4", "s_cselect_b32 s5, 36, s5", "s_cselect_b32 s6, 144, s6",
                           "s_cselect_b32 s7, 72, s7", "s_cselect_b32 s8, 18, s8",
                           f"s_mov_b32 s30, {D*D*2}", "s_cmp_lt_u32 s68, 18", "s_cselect_b32 s28, s72, s76",
                           "s_cselect_b32 s29, s73, s77", f"s_cselect_b32 s30, s30, {FH*D*2}", "s_mul_i32 s4, s4, 1152", "s_mul_i32 s9, s59, 144",
                           "s_add_u32 s4, s4, s9", "s_mul_i32 s9, s51, 4608", f"s_add_u32 s9, s9, {slot*SLOT}"):
                    A(s_)
            R.grp(g, 10)
            t0, t1, t2, t3, t4 = H_D, H_D + 1, H_D + 2, H_D + 3, H_D + 4
            for s_ in (f"v_mul_u32_u24 v{t0}, 7282, v0", f"v_lshrrev_b32 v{t0}, 16, v{t0}", f"v_mul_u32_u24 v{t1}, 9, v{t0}",
                       f"v_sub_u32 v{t1}, v0, v{t1}", f"v_lshlrev_b32 v{t1}, 4, v{t1}"):
                R(s_)
            for p in range(5):
                R(f"v_add_u32 v{t2}, {7*p}, v{t0}")
                R(f"v_and_b32 v{t3}, 1, v{t2}")
                for bit, co in ((1, "s8"), (2, "s7"), (3, "s6"), (4, "s5")):
                    R(f"v_bfe_u32 v{t4}, v{t2}, {bit}, 1")
                    R(f"v_mad_u32_u24 v{t3}, v{t4}, {co}, v{t3}")
                R(f"v_mul_u32_u24 v{t3}, 1152, v{t3}")
                R(f"v_add_u32 v{t3}, v{t3}, v{t1}")
                def g2(p=p):
                    A(f"s_add_u32 m0, s9, {p*1008}")
                    A("s_mov_b32 exec_hi, " + ("0xf" if p == 4 else "0x7fffffff"))
                    ev["rp"] = A.vm(f"buffer_load_dwordx4 v{t3}, s[28:31], s4 offen lds")
                    A("s_mov_b64 exec, -1")
                R.grp(g2, 3)
            a0, a2, a3 = 241, 240, 242
            for s_ in (f"v_lshrrev_b32 v{a0}, 2, v0", f"v_mul_u32_u24 v{a0}, 144, v{a0}", f"v_and_b32 v{a3}, 3, v0",
                       f"v_lshl_add_u32 v{a0}, v{a3}, 3, v{a0}", f"v_add_u32 v{a0}, s9, v{a0}",
                       f"v_lshrrev_b32 v{a2}, 4, v0", f"v_lshlrev_b32 v{a2}, 7, v{a2}", f"v_and_b32 v{a3}, 7, v0",
                       f"v_lshl_add_u32 v{a2}, v{a3}, 4, v{a2}", f"v_and_b32 v{a3}, 8, v0", f"v_lshl_add_u32 v{a2}, v{a3}, 24, v{a2}",
                       f"v_add_u32 v{a2}, 4096, v{a2}"):
                R(s_)
        def repack_read(R):
            R.wait_vm("rp")
            for dt in range(5):
                R.lg("rr", f"ds_read_b64_tr_b16 {v(220+4*dt,2)}, v241 offset:{dt*32}")
                R.lg("rr", f"ds_read_b64_tr_b16 {v(220+4*dt+2,2)}, v241 offset:{2304+dt*32}")
        def repack_store():
            A(f"s_add_u32 s20, s46, {WS_WP}")
            A("s_addc_u32 s21, s47, 0")
            A(f"s_mov_b32 s22, {SZ_WP}")
            A("s_mul_i32 s4, s59, 90")
            A("s_add_u32 s4, s4, s68")
            A("s_mul_i32 s4, s4, 4608")
            A("s_cmp_lt_u32 s68, 90")
            A(f"s_cselect_b32 s4, s4, {SZ_WP}")
            it = []
            for dt in range(4): it.append(f"buffer_store_dwordx4 {v(220+4*dt,4)}, v{H_L16}, s[20:23], s4 offen offset:{dt*1024} sc1")
            it.append(f"buffer_store_dwordx4 {v(236,4)}, v240, s[20:23], s4 offen sc1")
            return it

        def q_round(p, part):
            R = Rec(p - 1)
            for n in (2 * p, 2 * p + 1):
                if part & 1:
                    for s_ in norm_ins(n): R(s_)
                if part & 2: R.grp(lambda n=n: ev.__setitem__("xw", xwrite(n)), 3)
        q_round(3, 3); q_round(4, 3)
        LASTB = opt.get('lastb', 23)
        qst = []
        A.wait_vm(tok[1])
        A("s_barrier")
        for st in range(LASTB + 1):
            if st > 0:
                flush(st)
                if 2 <= st <= 7: A.wait_lg(ev["xw"])
                if st in (11, 20): A.drain_lg()
                if st + 1 in tok: A.wait_vm(tok[st + 1])
                if st == LASTB: A.wait_vm(tok[26])
                if opt.get("trace"):
                    A("s_memtime s[100:101]"); A.nlg += 2; A.drain_lg(); A(f"v_writelane_b32 v250, s100, {2*st}")
                A("s_barrier")
                if opt.get("trace"):
                    A("s_memtime s[100:101]"); A.nlg += 2; A.drain_lg(); A(f"v_writelane_b32 v250, s100, {2*st+1}")
            VQ = []
            for s2 in issue_at.get(st, []): VQ += dma_items(s2)
            if 2 <= st <= 5: q_round(st + 3, 3)
            for _ in range(opt.get("hpn", [2,2,2,2,2,2,2,1,0,2])[st] if st < 10 else 0):
                if HPF: VQ.append(HPF.pop(0))
            if st == 6:
                Rec(7).vm("nonce", f"buffer_load_dword v{H_PR}, off, s[40:43], 0 sc1")
            if st == opt.get('nst', 9): front(nonce_get, st + 1)
            PFS = opt.get("pfs", [])
            for q_, ps in enumerate(PFS):
                if ps == st: VQ.append(pf_item(q_))
            if st == 10:
                hread(Rec(11), 9, H_Z2, "hz2")
                R = Rec(PUB)
                for t in range(9):
                    for rt in range(2):
                        s0 = ST + 4 * rt
                        gelu(R, H_Z2 + 4 * t + 2 * rt, (s0, s0 + 1, s0 + 2, s0 + 3), t == 0)
                publish(R)
            if st == 19:
                def qprep(R):
                    hread(R, 18, H_QK, "hq", 7)
                    for s_ in ("s_lshl_b32 s61, s48, 2", "s_add_u32 s61, s61, s51", "s_mul_i32 s61, s61, 110592", "s_lshl_b32 s63, s67, 5",
                               "s_add_u32 s61, s61, s63", "s_add_u32 s70, s61, 4096"):
                        R(s_)
                    for t in range(7):
                        R(f"v_permlane16_swap_b32 v{H_QK[t]}, v{H_QK[t]+2}")
                        R(f"v_permlane16_swap_b32 v{H_QK[t]+1}, v{H_QK[t]+3}")
                front(qprep, 20)
                for t in range(7):
                    qst.append(lambda t=t, sr="s[32:35]": A.vm(f"buffer_store_dwordx4 {v(H_QK[t],4)}, v{H_L16}, {sr}, {'s61' if t < 4 else 's70'} offen offset:{(t%4)*1024} sc1"))
            if st >= 20 and st in opt.get("qss", [19.5, 21, 22]): VQ.append(qst.pop(0))
            if st == POLL: front(part_issue, POLL + 1)
            if st == FIN: front(final, LASTB)
            if st == rp[0] and not opt.get("rp_late", 0): repack_issue(Rec(27), rp[1])
            if st == LASTB: break
            bud = stage_budget(st)
            per = bud / (len(VQ) + 1)
            for g in VQ:
                g(); run(per)
            run(per)
        assert rp[0] <= LASTB and POLL <= LASTB
        for zs in zlate: zs()
        if opt.get("rp_late", 0): front(lambda R: repack_issue(R, rp[1]), 27)
        flush(27)
        def tr(n):
            if opt.get("trace"):
                A("s_memtime s[100:101]"); A.nlg += 2; A.drain_lg(); A(f"v_writelane_b32 v250, s100, {n}")
        tr(56)
        A.wait_vm(ev["zst"])
        opt["zflag"](A, LL)
        tr(57)
        front(repack_read, 27); flush(27)
        tr(55)
        A.drain_lg()
        if opt.get("trace"): trace_dump(A)
        A("s_barrier")
        opt["h_tail"](A, L, LL, big, dict(repack_store=repack_store, qst=qst))
        return A.text()
    text += hprog(True)
    text += L("H4") + ":\n" + hprog(False)
    text += opt["h_post"](L)
    text += L("end") + ":\n    s_endpgm\n"
    return text, kernel_desc(name, 256, 102), f"; @launch kernel={name} grid=(256,1,1) block=(512,1,1) lds=163840"

if __name__ == "__main__":
    print(slot_plan())
```
